```python
import torch

def _softmax(x, axis=-1):
    return torch.softmax(x, dim=axis)
def _gelu(x):
    return torch.nn.functional.gelu(x, approximate="tanh")
def _silu(x):
    return torch.nn.functional.silu(x)
def _sigmoid(x):
    return torch.sigmoid(x)
def _layernorm(x, axis=-1, eps=1e-5):
    m = x.mean(dim=axis, keepdim=True)
    v = x.var(dim=axis, keepdim=True, unbiased=False)
    return (x - m) / torch.sqrt(v + eps)
def _scatter_add(tgt, idx, src, axis=0):
    return tgt.clone().index_add_(axis, idx, src)
def _segment_sum(src, seg, n):
    out = torch.zeros((n,) + src.shape[1:], dtype=src.dtype)
    return out.index_add_(0, seg, src)
def _pad(x, pw):
    flat = tuple(v for pair in reversed(pw) for v in pair)
    return torch.nn.functional.pad(x, flat)

kernel_name = 'recurrent_scan__grouped_kv_mqa__geglu_ffn__prompt'

def setup_inputs():

    _w = (lambda a: (lambda t: t.to(torch.bfloat16) if t.is_floating_point() else t)(torch.as_tensor(a)))
    def _A_setup():
        B, S, D, H = 1, 2048, 512, 32
        Dh = D // H
        return {
            "x": _w((lambda *s: torch.randn(*s, dtype=torch.bfloat16) * 0.05)(B, S, D)),
            "wq": _w((lambda *s: torch.randn(*s, dtype=torch.bfloat16) * 0.05)(D, H * Dh)),
            "wk": _w((lambda *s: torch.randn(*s, dtype=torch.bfloat16) * 0.05)(D, Dh)),
            "wv": _w((lambda *s: torch.randn(*s, dtype=torch.bfloat16) * 0.05)(D, Dh)),
            "wo": _w((lambda *s: torch.randn(*s, dtype=torch.bfloat16) * 0.05)(H * Dh, D)),
        }
    _A_in = _A_setup()

    def _B_setup():
        B, S, D, F = 1, 2048, 512, 1792
        return {
            "x": _w((lambda *s: torch.randn(*s, dtype=torch.bfloat16) * 0.05)(B, S, D)),
            "w_gate": _w((lambda *s: torch.randn(*s, dtype=torch.bfloat16) * 0.05)(D, F)),
            "w_up": _w((lambda *s: torch.randn(*s, dtype=torch.bfloat16) * 0.05)(D, F)),
            "w_down": _w((lambda *s: torch.randn(*s, dtype=torch.bfloat16) * 0.05)(F, D)),
        }
    _B_in = _B_setup()

    return {
        "A_x": _A_in["x"],
        "A_wq": _A_in["wq"],
        "A_wk": _A_in["wk"],
        "A_wv": _A_in["wv"],
        "A_wo": _A_in["wo"],
        "B_x": _B_in["x"],
        "B_w_gate": _B_in["w_gate"],
        "B_w_up": _B_in["w_up"],
        "B_w_down": _B_in["w_down"],
    }

def reference(A_x, A_wq, A_wk, A_wv, A_wo, B_x, B_w_gate, B_w_up, B_w_down):
    def _A_ref(x, wq, wk, wv, wo):
        B, S, D = x.shape
        H = 32
        Dh = D // H
        q = (lambda x, *d: x.permute(*d))((x @ wq).reshape(B, S, H, Dh), 0, 2, 1, 3)
        k = x @ wk
        v = x @ wv
        scores = torch.einsum("bhqd,bkd->bhqk", q, k) * (Dh ** -0.5)
        p = _softmax(scores, axis=-1)
        o = torch.einsum("bhqk,bkd->bhqd", p, v)
        return (lambda x, *d: x.permute(*d))(o, 0, 2, 1, 3).reshape(B, S, H * Dh) @ wo

    def _B_ref(x, w_gate, w_up, w_down):
        return (_gelu(x @ w_gate) * (x @ w_up)) @ w_down

    x = A_x
    xn = _layernorm(x, axis=-1)
    s = _A_ref(xn, A_wq, A_wk, A_wv, A_wo)
    g = _silu(_B_ref(xn, B_w_gate, B_w_up, B_w_down))
    return x + s * g
```

```python
import re, sys

TRANS = ("v_exp_f32", "v_log_f32", "v_rcp_f32", "v_rsq_f32", "v_sqrt_f32", "v_sin_f32", "v_cos_f32",
         "v_exp_f16", "v_rcp_f16", "v_rcp_iflag_f32")

def regs_of(tok):
    tok = tok.strip()
    tok = tok.lstrip("-")
    m = re.match(r"^abs\((.*)\)$", tok) or re.match(r"^\|(.*)\|$", tok)
    if m: tok = m.group(1)
    m = re.match(r"^([vsa])\[(\d+):(\d+)\]$", tok)
    if m: return [(m.group(1), i) for i in range(int(m.group(2)), int(m.group(3)) + 1)]
    m = re.match(r"^([vsa])(\d+)$", tok)
    if m: return [(m.group(1), int(m.group(2)))]
    if tok in ("vcc", "vcc_lo", "vcc_hi"): return [("x", "vcc")]
    if tok in ("exec", "exec_lo", "exec_hi"): return [("x", "exec")]
    if tok == "m0": return [("x", "m0")]
    return []

class Ins:
    def __init__(self, text):
        self.text = text
        t = text.split(";")[0].strip()
        self.label = None
        self.op = None
        if t.endswith(":"):
            self.label = t[:-1]; return
        if not t or t.startswith("."):
            return
        parts = t.split(None, 1)
        self.op = parts[0]
        rest = parts[1] if len(parts) > 1 else ""
        ops, cur, depth = [], "", 0
        for ch in rest:
            if ch in "[(": depth += 1
            if ch in "])": depth -= 1
            if ch == "," and depth == 0: ops.append(cur.strip()); cur = ""
            else: cur += ch
        if cur.strip(): ops.append(cur.strip())
        self.mods = []
        if ops:
            sp = ops[-1].split()
            ops[-1] = sp[0]; self.mods = sp[1:]
        self.ops = ops
        self.classify()

    def classify(self):
        op, ops = self.op, self.ops
        R = lambda i: regs_of(ops[i]) if i < len(ops) else []
        self.dst, self.src = [], []
        self.cls = "other"
        self.passes = 0
        self.srcA = self.srcB = self.srcC = []
        self.is_load = False; self.is_store = False; self.lds_dma = False
        self.store_data = []
        if op.startswith("v_mfma") or op.startswith("v_smfmac"):
            self.cls = "mfma"
            self.passes = 8 if "32x32" in op else 4
            self.dst = R(0); self.srcA = R(1); self.srcB = R(2)
            if op.startswith("v_smfmac"):
                self.srcC = R(0); self.srcB = self.srcB + R(3)
            else:
                self.srcC = R(3)
            self.src = self.srcA + self.srcB + self.srcC
        elif op.startswith("v_"):
            self.cls = "valu"
            base = op.replace("_e32", "").replace("_e64", "").replace("_dpp", "").replace("_sdwa", "")
            self.trans = base in TRANS
            if base.startswith("v_cmp"):
                self.dst = R(0); self.src = sum((R(i) for i in range(1, len(ops))), [])
                if base.startswith("v_cmpx"): self.dst = self.dst + [("x", "exec")]
            elif base in ("v_add_co_u32", "v_sub_co_u32", "v_subrev_co_u32"):
                self.dst = R(0) + R(1); self.src = R(2) + R(3)
            elif base in ("v_addc_co_u32", "v_subb_co_u32"):
                self.dst = R(0) + R(1); self.src = R(2) + R(3) + R(4)
            elif base.startswith("v_permlane") and "swap" in base:
                self.dst = R(0) + R(1); self.src = R(0) + R(1)
            elif base == "v_nop":
                pass
            else:
                self.dst = R(0); self.src = sum((R(i) for i in range(1, len(ops))), [])
                if base in ("v_fmac_f32", "v_pk_fmac_f16", "v_dot2c_f32_bf16", "v_writelane_b32"):
                    self.src = self.src + R(0)
                if base == "v_cndmask_b32" and len(ops) == 3: self.src = self.src + [("x", "vcc")]
            self.dpp = any(m.startswith(("quad_perm", "row_", "wave_", "row_bcast")) for m in self.mods) or "_dpp" in op
            if self.dpp: self.src = self.src + R(0)
            self.base = base
        elif op.startswith("buffer_") or op.startswith("global_"):
            self.cls = "vmem"
            lds = "lds" in self.mods or "_lds_" in op
            if op in ("buffer_wbl2", "buffer_inv"):
                pass
            elif op.startswith("buffer_load"):
                if lds:
                    self.lds_dma = True
                    self.src = sum((R(i) for i in range(0, len(ops))), []) + [("x", "m0")]
                else:
                    self.is_load = True
                    self.dst = R(0); self.src = sum((R(i) for i in range(1, len(ops))), [])
            elif op.startswith("buffer_store"):
                self.is_store = True
                self.store_data = R(0)
                self.src = sum((R(i) for i in range(0, len(ops))), [])
            elif op.startswith("buffer_atomic"):
                self.src = sum((R(i) for i in range(0, len(ops))), [])
                if "sc0" in self.mods: self.is_load = True; self.dst = R(0)
            elif op.startswith("global_load"):
                if lds:
                    self.lds_dma = True
                    self.src = sum((R(i) for i in range(0, len(ops))), []) + [("x", "m0")]
                else:
                    self.is_load = True
                    self.dst = R(0); self.src = sum((R(i) for i in range(1, len(ops))), [])
            elif op.startswith("global_store"):
                self.is_store = True
                self.store_data = R(1)
                self.src = sum((R(i) for i in range(0, len(ops))), [])
            elif op.startswith("global_atomic"):
                if "sc0" in self.mods:
                    self.is_load = True; self.dst = R(0); self.src = sum((R(i) for i in range(1, len(ops))), [])
                else:
                    self.src = sum((R(i) for i in range(0, len(ops))), [])
        elif op.startswith("ds_"):
            self.cls = "ds"
            if op.startswith("ds_read") or op.startswith("ds_bpermute") or op.startswith("ds_permute") or op.startswith("ds_swizzle") or "_rtn" in op:
                self.is_load = True
                self.dst = R(0); self.src = sum((R(i) for i in range(1, len(ops))), [])
            else:
                self.src = sum((R(i) for i in range(0, len(ops))), [])
        elif op.startswith("s_load") or op.startswith("s_buffer_load") or op in ("s_memtime", "s_memrealtime"):
            self.cls = "smem"; self.is_load = True
            self.dst = R(0); self.src = sum((R(i) for i in range(1, len(ops))), [])
        elif op in ("s_nop", "s_waitcnt", "s_barrier", "s_endpgm", "s_setprio", "s_sleep", "s_branch") or op.startswith("s_cbranch"):
            self.cls = "ctl"
            if op in ("s_cbranch_vccz", "s_cbranch_vccnz"): self.src = [("x", "vcc")]
        elif op.startswith("s_"):
            self.cls = "salu"
            if op.startswith("s_cmp") or op.startswith("s_bitcmp"):
                self.src = sum((R(i) for i in range(0, len(ops))), [])
            else:
                self.dst = R(0); self.src = sum((R(i) for i in range(1, len(ops))), [])
                if "saveexec" in op: self.dst = self.dst + [("x", "exec")]; self.src = self.src + [("x", "exec")]
                if op in ("s_addk_i32", "s_mulk_i32"): self.src = self.src + R(0)

    def states(self):
        if self.op == "s_nop": return int(self.ops[0], 0) + 1
        return 1

def required(P, C):
    need, why = 0, ""
    def upd(n, w):
        nonlocal need, why
        if n > need: need, why = n, w
    pd = set(P.dst)
    if P.cls == "valu":
        pv = {r for r in pd if r[0] in "va"}
        ps = {r for r in pd if r[0] == "s" or r == ("x", "vcc")}
        if C.cls == "mfma" and pv & set(C.src): upd(2, "VALU->MFMA src")
        if C.cls == "valu":
            if P.trans and not C.trans and pv & set(C.src): upd(1, "trans->VALU")
            if C.base in ("v_readfirstlane_b32", "v_readlane_b32") and pv & set(C.src): upd(1, "VALU->readlane")
            if C.base.startswith("v_permlane") and pv & set(C.src): upd(2, "VALU->permlane")
            if C.dpp and pv & set(C.src): upd(2, "VALU->DPP")
            if ps & set(C.src): upd(2, "VALU sgpr->VALU read")
            if C.base in ("v_readlane_b32", "v_writelane_b32") and ps & set(C.src): upd(4, "VALU sgpr->lane sel")
            if ("x", "exec") in pd and (C.dpp or C.base.startswith(("v_readlane", "v_readfirstlane", "v_writelane", "v_permlane"))): upd(5, "exec write")
            if any(m.startswith(("op_sel", "dst_sel")) for m in P.mods) and not P.base.startswith("v_pk") and pv & set(C.src + C.dst): upd(1, "opsel")
        if P.base.startswith("v_dot") and C.cls in ("valu", "mfma", "vmem", "ds") and pv & set(C.src + C.dst):
            if not (C.cls == "valu" and C.base == P.base and list(C.dst) == list(P.dst) and not (pv & set(C.src[:-len(C.dst)]))): upd(3, "DLop")
        if C.cls == "mfma" and ("x", "exec") in pd: upd(4, "VALU exec->MFMA")
        if C.cls == "vmem" and ps & set(C.src): upd(5, "VALU sgpr->VMEM")
        if C.cls == "ctl" and ("x", "vcc") in pd and ("x", "vcc") in C.src: upd(0, "")
    if P.cls == "salu":
        if ("x", "m0") in pd and C.cls == "vmem" and C.lds_dma: upd(1, "m0->DMA")
    if P.cls == "mfma":
        n = {8: 12, 4: 8}[P.passes]
        if C.cls == "valu" and pd & set(C.src + C.dst): upd(n, "MFMA D->VALU")
        if C.cls in ("vmem", "ds") and pd & set(C.src + C.dst): upd(n, "MFMA D->mem")
        if C.cls == "mfma":
            if pd & set(C.srcA + C.srcB): upd(n, "MFMA D->MFMA A/B")
            if pd & set(C.srcC):
                if not (list(P.dst) == list(C.srcC) and P.passes == C.passes): upd({8: 10, 4: 6}[P.passes], "MFMA D->srcC overlap")
        if C.cls == "valu" and set(P.srcC) & set(C.dst): upd({8: 7, 4: 3}[P.passes], "MFMA srcC WAR")
    if P.cls == "vmem" and P.is_store and len(P.store_data) >= 3:
        if set(P.store_data) & set(C.dst): upd(2 if C.cls == "valu" else 1, "store data WAR")
    return need, why

class Kernel:
    def __init__(self, name):
        self.name = name
        self.lines = []
        self._lab = 0
    def e(self, s):
        for l in s.split("\n"):
            l = l.strip()
            if l: self.lines.append("  " + l if not l.endswith(":") else l)
    def c(self, s): self.lines.append("  ; " + s)
    def label(self, l): self.lines.append(l + ":")
    def newlabel(self, base="L"):
        self._lab += 1
        return f".{self.name}_{base}{self._lab}"
    def text(self): return "\n".join(self.lines) + "\n"

    def parse(self):
        ins = [Ins(l) for l in self.lines]
        code = []; labels = {}
        for i in ins:
            if i.label: labels[i.label] = len(code)
            elif i.op: code.append(i)
        succ = [[] for _ in code]
        for k, i in enumerate(code):
            if i.op == "s_endpgm": continue
            if i.op == "s_branch": succ[k].append(labels[i.ops[0]]); continue
            if i.op.startswith("s_cbranch"): succ[k].append(labels[i.ops[0]])
            if k + 1 < len(code): succ[k].append(k + 1)
        pred = [[] for _ in code]
        for k, s in enumerate(succ):
            for t in s:
                if t < len(code): pred[t].append(k)
        return code, succ, pred

    def check_hazards(self, maxd=21):
        code, succ, pred = self.parse()
        errs = []
        for k, C in enumerate(code):
            if C.cls in ("ctl",): continue
            stack = [(p, 0) for p in pred[k]]
            seen = {}
            while stack:
                p, d = stack.pop()
                if seen.get(p, 99) <= d: continue
                seen[p] = d
                P = code[p]
                need, why = required(P, C)
                if need > d:
                    errs.append(f"HAZARD {why}: need {need} have {d}\n    P[{p}]: {P.text.strip()}\n    C[{k}]: {C.text.strip()}")
                nd = d + P.states()
                if nd < maxd:
                    for q in pred[p]: stack.append((q, nd))
        return errs

    def check_waits(self, max_states=400000):
        code, succ, pred = self.parse()
        errs = set()
        start = (0, (), ())
        seen = set(); stack = [start]
        n = 0
        while stack:
            st = stack.pop()
            if st in seen: continue
            seen.add(st); n += 1
            if n > max_states:
                errs.add("check_waits: state explosion, incomplete"); break
            pc, vm, lg = st
            I = code[pc]
            vm = list(vm); lg = list(lg)
            touched = set(I.src) | set(I.dst)
            for q, nm in ((vm, "vmcnt"), (lg, "lgkmcnt")):
                for ent in q:
                    if touched & set(ent[1]):
                        errs.add(f"WAIT {nm}: reg of outstanding load [{code[ent[0]].text.strip()}] touched by [{pc}] {I.text.strip()}")
            if I.op == "s_waitcnt":
                t = I.text.split(";")[0]
                m = re.search(r"vmcnt\((\d+)\)", t)
                if m:
                    N = int(m.group(1)); vm = vm[len(vm) - N:] if N < len(vm) else vm
                    if N == 0: vm = []
                m = re.search(r"lgkmcnt\((\d+)\)", t)
                if m:
                    N = int(m.group(1))
                    if N == 0: lg = []
                    elif any(e[2] for e in lg): pass
                    else: lg = lg[len(lg) - N:] if N < len(lg) else lg
            elif I.cls == "vmem" and I.op not in ("buffer_wbl2", "buffer_inv"):
                vm.append((pc, tuple(I.dst) if I.is_load and "; touch" not in I.text else ()))
                if len(vm) > 63: vm = vm[-63:]
            elif I.cls == "ds":
                lg.append((pc, tuple(I.dst) if I.is_load else (), False))
                if len(lg) > 40: lg = lg[-40:]
            elif I.cls == "smem":
                lg.append((pc, tuple(I.dst), True))
            while vm and not vm[0][1]: vm.pop(0)
            while lg and not lg[0][1] and not lg[0][2]: lg.pop(0)
            for s in succ[pc]:
                if s < len(code): stack.append((s, tuple(vm), tuple(lg)))
        return sorted(errs)

    def max_regs(self):
        code, _, _ = self.parse()
        mv = ms = ma = -1
        for i in code:
            for r in i.src + i.dst:
                if r[0] == "v": mv = max(mv, r[1])
                if r[0] == "s": ms = max(ms, r[1])
                if r[0] == "a": ma = max(ma, r[1])
        return mv + 1, ms + 1, ma + 1
```

```python
from common import *

A_RING = 0
A_ONES = 65536
A_LDS = 65536 + 8192

def emit_attn(k, wgreg="s2", publish=None, store_mod=""):
    e = k.e
    e("s_load_dwordx2 s[12:13], s[0:1], 88")
    e(f"s_and_b32 s14, {wgreg}, 7")
    e("s_lshl_b32 s14, s14, 2")
    e(f"s_lshr_b32 s15, {wgreg}, 6")
    e("s_add_u32 s14, s14, s15")
    e(f"s_lshr_b32 s15, {wgreg}, 3")
    e("s_and_b32 s15, s15, 7")
    e("v_lshrrev_b32 v1, 6, v0")
    e("v_and_b32 v2, 63, v0")
    e("v_readfirstlane_b32 s16, v1")
    e("v_lshlrev_b32 v12, 4, v2")
    e("v_mov_b32 v3, 0xdddd")
    e("s_lshl_b32 s17, s14, 16")
    e("s_lshl_b32 s18, s15, 12")
    e("s_add_u32 s17, s17, s18")
    e("s_lshl_b32 s18, s16, 10")
    e("s_add_u32 s17, s17, s18")
    e("s_lshl_b32 s19, s16, 12")
    e("s_waitcnt lgkmcnt(0)")
    srd(k, 20, 12, WS_SIZE)
    e(f"s_add_u32 s24, s12, {hx(WS_KV)}")
    e("s_addc_u32 s25, s13, 0")
    e("s_mov_b32 s26, 0x20000")
    e("s_mov_b32 s27, 0x20000")
    def dma(soff, m0v):
        e(f"s_mov_b32 m0, {m0v}")
        e("s_nop 0")
        for q in range(4):
            e(f"buffer_load_dwordx4 v12, s[24:27], {soff} offen offset:{q*1024} lds")
    dma("s19", "s19")
    e(f"s_add_u32 s28, s17, {hx(WS_QF)}")
    e(f"s_add_u32 s29, s28, 32768")
    e("buffer_load_dwordx4 v[4:7], v12, s[20:23], s28 offen")
    e("buffer_load_dwordx4 v[8:11], v12, s[20:23], s29 offen")
    e("s_add_u32 s30, s19, 16384")
    dma("s30", "s30")
    e("s_add_u32 s30, s30, 16384")
    dma("s30", "s30")
    e("s_add_u32 s30, s30, 16384")
    for r in range(4): e(f"v_mov_b32 v{16+r}, 0x3f803f80")
    e("s_lshl_b32 s18, s16, 11")
    e(f"s_add_u32 s18, s18, {A_ONES}")
    e("v_add_u32 v13, s18, v12")
    e("ds_write_b128 v13, v[16:19]")
    e("ds_write_b128 v13, v[16:19] offset:1024")
    e("v_and_b32 v13, 15, v2")
    e("v_lshlrev_b32 v13, 4, v13")
    e("v_lshrrev_b32 v14, 5, v2")
    e("v_lshl_add_u32 v13, v14, 8, v13")
    e("v_bfe_u32 v14, v2, 4, 1")
    e(f"v_mov_b32 v15, {A_ONES - 8192}")
    e("v_mad_u32_u24 v13, v14, v15, v13")
    e("v_xor_b32 v14, 1, v14")
    SA, SB, O0, O1 = 16, 32, 48, 64
    KF = [80, 84]; VF = [88, 96]
    vKc, vKn, vVc, vVn = 104, 105, 106, 107
    e(f"v_mov_b32 v{vKc}, v12")
    e(f"v_add_u32 v{vKn}, 16384, v12")
    e(f"v_mov_b32 v{vVc}, v13")
    e("s_mov_b32 s31, 16384")
    e(f"v_mad_u32_u24 v{vVn}, v14, s31, v13")
    for r in range(16):
        e(f"v_mov_b32 v{O0+r}, 0")
        e(f"v_mov_b32 v{O1+r}, 0")
    S = [SA, SB]; O = [O0, O1]; Q = [4, 8]
    def rdK(t):
        a = vKc if t < 8 else vKn
        e(f"ds_read_b128 v[{KF[t%2]}:{KF[t%2]+3}], v{a} offset:{(t%8)*1024}")
    def rdV(t):
        a = vVc if t < 8 else vVn
        for c in range(2):
            e(f"ds_read_b128 v[{VF[t%2]+4*c}:{VF[t%2]+4*c+3}], v{a} offset:{8192+(t%8)*1024+c*512}")
    def ex(b, lo, hi):
        for r in range(lo, hi): e(f"v_exp_f32 v{b+r}, v{b+r}")
    def qk(X, t, q):
        e(f"v_mfma_f32_32x32x16_bf16 v[{X}:{X+15}], v[{KF[t%2]}:{KF[t%2]+3}], v[{Q[q]}:{Q[q]+3}], 0")
    e("s_waitcnt vmcnt(8) lgkmcnt(0)")
    e("s_barrier")
    rdK(0); rdK(1); rdV(0)
    e("s_waitcnt lgkmcnt(3)")
    qk(SA, 0, 0)
    qk(SB, 0, 1)
    e("s_nop 10")
    ex(SA, 0, 5)
    e("s_mov_b32 s33, 8")
    L_loop = k.newlabel("aloop")
    k.label(L_loop)
    for t in range(8):
        for q in range(2):
            X, Y = S[q], S[1 - q]
            V0, V1 = VF[t % 2], VF[t % 2] + 4
            ex(X, 5, 7)
            if q == 0:
                e("s_waitcnt lgkmcnt(0)")
                rdV(t + 1)
            else:
                rdK(t + 2)
            ex(X, 7, 10)
            e(f"v_smfmac_f32_32x32x32_bf16 v[{O[q]}:{O[q]+15}], v[{V0}:{V0+3}], v[{X}:{X+7}], v3")
            ex(X, 10, 13)
            if t == 5 and q == 0:
                e("s_waitcnt vmcnt(4)")
                e("s_barrier")
                e("s_and_b32 s34, s30, 0xffff")
                dma("s30", "s34")
                e("s_add_u32 s30, s30, 16384")
            ex(X, 13, 16)
            ex(Y, 0, 2)
            e(f"v_smfmac_f32_32x32x32_bf16 v[{O[q]}:{O[q]+15}], v[{V1}:{V1+3}], v[{X+8}:{X+15}], v3")
            ex(Y, 2, 5)
            qk(X, t + 1, q)
    e("s_add_u32 s31, s31, 16384")
    e("s_and_b32 s31, s31, 0xffff")
    e(f"v_mov_b32 v{vKc}, v{vKn}")
    e(f"v_mov_b32 v{vVc}, v{vVn}")
    e(f"v_add_u32 v{vKn}, s31, v12")
    e(f"v_mad_u32_u24 v{vVn}, v14, s31, v13")
    e("s_sub_u32 s33, s33, 1")
    e("s_cmp_lg_u32 s33, 0")
    e(f"s_cbranch_scc1 {L_loop}")
    e("s_waitcnt lgkmcnt(0)")
    e("s_nop 3")
    L_fin = k.newlabel("afin"); L_slow = k.newlabel("aslow")
    e(f"s_mov_b32 s36, {hx(f32bits(2.0**-60))}")
    e(f"s_mov_b32 s37, {hx(f32bits(2.0**60))}")
    e(f"s_mov_b32 s38, {hx(f32bits(2.0**120))}")
    for q in range(2):
        o = O[q]
        e(f"v_max3_f32 v{16+q}, abs(v{o}), abs(v{o+1}), abs(v{o+2})")
        e(f"v_max3_f32 v{16+q}, v{16+q}, abs(v{o+3}), abs(v{o+4})")
        e(f"v_max3_f32 v{16+q}, v{16+q}, abs(v{o+5}), abs(v{o+6})")
        e(f"v_max_f32 v{16+q}, v{16+q}, abs(v{o+7})".replace("v_max_f32", "v_max_f32_e64"))
    for q in range(2):
        o = O[q]
        e(f"v_add_f32 v{18+q}, v{o}, v{o+1}")
        for r in range(2, 8): e(f"v_add_f32 v{18+q}, v{18+q}, v{o+r}")
    e(f"v_cmp_ge_f32 s[40:41], v{O0+8}, s36")
    e(f"v_cmp_le_f32 s[42:43], v{O0+8}, s37")
    e(f"v_cmp_ge_f32 s[44:45], v{O1+8}, s36")
    e(f"v_cmp_le_f32 s[46:47], v{O1+8}, s37")
    e(f"v_cmp_le_f32 s[48:49], v16, s38")
    e(f"v_cmp_le_f32 s[50:51], v17, s38")
    e(f"v_cmp_o_f32 s[52:53], v18, v19")
    e("s_and_b64 s[40:41], s[40:41], s[42:43]")
    e("s_and_b64 s[44:45], s[44:45], s[46:47]")
    e("s_and_b64 s[48:49], s[48:49], s[50:51]")
    e("s_and_b64 s[40:41], s[40:41], s[44:45]")
    e("s_and_b64 s[48:49], s[48:49], s[52:53]")
    e("s_and_b64 s[40:41], s[40:41], s[48:49]")
    e("s_cmp_eq_u64 s[40:41], -1")
    e(f"s_cbranch_scc0 {L_slow}")
    k.label(L_fin)
    e(f"s_add_u32 s28, s17, {hx(WS_OF)}")
    e(f"s_add_u32 s29, s28, 32768")
    e(f"v_rcp_f32 v16, v{O0+8}")
    e(f"v_rcp_f32 v18, v{O1+8}")
    e("s_nop 0")
    e("v_mov_b32 v17, v16")
    e("v_mov_b32 v19, v18")
    for q in range(2):
        o = O[q]
        for r in range(0, 8, 2):
            e(f"v_pk_mul_f32 v[{o+r}:{o+r+1}], v[{o+r}:{o+r+1}], v[{16+2*q}:{17+2*q}]")
        for r in range(4):
            e(f"v_cvt_pk_bf16_f32 v{20+4*q+r}, v{o+2*r}, v{o+2*r+1}")
        e(f"buffer_store_dwordx4 v[{20+4*q}:{23+4*q}], v12, s[20:23], s{28+q} offen{store_mod}")
    if publish: publish(k)
    e("s_endpgm")

    k.label(L_slow)
    e("s_waitcnt vmcnt(0)")
    e("v_and_b32 v13, 15, v2")
    e("v_lshlrev_b32 v13, 4, v13")
    e("v_lshrrev_b32 v15, 5, v2")
    e("v_lshl_add_u32 v13, v15, 8, v13")
    e("v_add_u32 v13, 8192, v13")
    e("v_cmp_eq_u32 s[54:55], 0, v14")
    e("v_mov_b32 v108, 0x3f803f80")
    e("v_mov_b32 v110, 0xff800000")
    e("v_mov_b32 v111, 0xff800000")
    for r in range(16):
        e(f"v_mov_b32 v{O0+r}, 0")
        e(f"v_mov_b32 v{O1+r}, 0")
    e("s_mov_b32 s33, 0")
    L_sl = k.newlabel("asl")
    k.label(L_sl)
    e("s_lshr_b32 s34, s33, 3")
    e("s_lshl_b32 s34, s34, 14")
    e("s_and_b32 s35, s33, 7")
    e("s_lshl_b32 s35, s35, 10")
    e("s_add_u32 s34, s34, s35")
    e("buffer_load_dwordx4 v[80:83], v12, s[24:27], s34 offen")
    e("buffer_load_dwordx4 v[88:91], v13, s[24:27], s34 offen")
    e("buffer_load_dwordx4 v[92:95], v13, s[24:27], s34 offen offset:512")
    e("s_waitcnt vmcnt(0)")
    for r in range(8): e(f"v_cndmask_b32 v{88+r}, v{88+r}, v108, s[54:55]")
    for q in range(2):
        X = S[q]; m = 110 + q; o = O[q]
        e(f"v_mfma_f32_32x32x16_bf16 v[{X}:{X+15}], v[80:83], v[{Q[q]}:{Q[q]+3}], 0")
        e("s_nop 11")
        e(f"v_max3_f32 v112, v{X}, v{X+1}, v{X+2}")
        for r in range(3, 15, 2): e(f"v_max3_f32 v112, v112, v{X+r}, v{X+r+1}")
        e(f"v_max_f32 v112, v112, v{X+15}")
        e("v_mov_b32 v113, v112")
        e("s_nop 1")
        e("v_permlane32_swap_b32 v112, v113")
        e("s_nop 1")
        e("v_max3_f32 v112, v112, v113, v" + str(m))
        e(f"v_cmp_eq_f32 vcc, v{m}, v112")
        e(f"v_sub_f32 v113, v{m}, v112")
        e("v_exp_f32 v113, v113")
        e("s_nop 0")
        e("v_cndmask_b32 v113, v113, 1.0, vcc")
        e(f"v_mov_b32 v{m}, v112")
        e("v_cmp_eq_f32 vcc, 0xff800000, v112")
        e("s_nop 1")
        e("v_cndmask_b32 v112, v112, 0, vcc")
        for r in range(16): e(f"v_mul_f32 v{o+r}, v113, v{o+r}")
        for r in range(16): e(f"v_sub_f32 v{X+r}, v{X+r}, v112")
        for r in range(16): e(f"v_exp_f32 v{X+r}, v{X+r}")
        e("s_nop 1")
        e(f"v_smfmac_f32_32x32x32_bf16 v[{o}:{o+15}], v[88:91], v[{X}:{X+7}], v3")
        e(f"v_smfmac_f32_32x32x32_bf16 v[{o}:{o+15}], v[92:95], v[{X+8}:{X+15}], v3")
    e("s_nop 11")
    e("s_add_u32 s33, s33, 1")
    e("s_cmp_lt_u32 s33, 64")
    e(f"s_cbranch_scc1 {L_sl}")
    e(f"s_branch {L_fin}")

def gen_attn(name="attn_kernel"):
    k = Kernel(name)
    L_end = k.newlabel("end")
    k.e("s_cmp_ge_u32 s2, 256")
    k.e(f"s_cbranch_scc1 {L_end}")
    emit_attn(k)
    k.label(L_end)
    k.e("s_endpgm")
    return k

if __name__ == "__main__":
    k = gen_attn()
    for x in k.check_hazards(): print(x)
    for x in k.check_waits(): print(x)
    print(k.max_regs(), len(k.lines))
```

```python
from asmlib import *
import math, struct

WS_XN = 0x000000
WS_QF = 0x200000
WS_KV = 0x400000
WS_HF = 0x500000
WS_OF = 0xC00000
WS_FL = 0xE00000
WS_SIZE = 0x1000000

def f32bits(x): return struct.unpack("<I", struct.pack("<f", x))[0]
def hx(x): return "0x%x" % (x & 0xffffffff)
QSCALE = 0.25 * math.log2(math.e)

def srd(k, d, base, size):
    if d != base:
        k.e(f"s_mov_b32 s{d}, s{base}")
        k.e(f"s_mov_b32 s{d+1}, s{base+1}")
    k.e(f"s_mov_b32 s{d+2}, {hx(size)}")
    k.e(f"s_mov_b32 s{d+3}, 0x20000")

def kernel_header(name):
    return f""".globl {name}
.p2align 8
.type {name},@function
{name}:
"""

def kernel_desc(name, vgpr, sgpr, agpr=0):
    accum = (vgpr + 3) // 4 * 4
    nfv = accum + agpr if agpr else vgpr
    return f""".amdhsa_kernel {name}
  .amdhsa_next_free_vgpr {nfv}
  .amdhsa_next_free_sgpr {sgpr}
  .amdhsa_accum_offset {accum}
  .amdhsa_group_segment_fixed_size 0
  .amdhsa_kernarg_size 96
  .amdhsa_user_sgpr_count 2
  .amdhsa_user_sgpr_kernarg_segment_ptr 1
  .amdhsa_system_sgpr_workgroup_id_x 1
.end_amdhsa_kernel
"""
```

```python
from common import *

U_BUF = 28928
U_UP = 14464
U_LDS = 2 * U_BUF

class Q:
    def __init__(self): self.q = []
    def push(self, tag): self.q.append(tag)
    def need(self, tags):
        idx = [i for i, t in enumerate(self.q) if t in tags]
        if not idx: return None
        n = len(self.q) - 1 - max(idx)
        self.q = self.q[max(idx) + 1:]
        return n

def emit_up(k, wgreg="s2", store_mod=""):
    e = k.e
    e("s_load_dwordx4 s[4:7], s[0:1], 48")
    e("s_load_dwordx2 s[12:13], s[0:1], 88")
    e(f"s_and_b32 s14, {wgreg}, 1")
    e("s_lshl_b32 s14, s14, 3")
    e(f"s_bfe_u32 s15, {wgreg}, 0x30003")
    e("s_add_u32 s14, s14, s15")
    e(f"s_bfe_u32 s15, {wgreg}, 0x20001")
    e("s_lshl_b32 s15, s15, 2")
    e(f"s_lshr_b32 s17, {wgreg}, 6")
    e("s_add_u32 s15, s15, s17")
    e("v_lshrrev_b32 v1, 6, v0")
    e("v_and_b32 v2, 63, v0")
    e("v_readfirstlane_b32 s16, v1")
    e("v_lshlrev_b32 v3, 4, v2")
    e("s_movk_i32 s18, 4682")
    e("s_movk_i32 s19, 3360")
    for n in range(7):
        e(f"v_add_u32 v11, {64*n}, v2")
        e(f"v_mul_u32_u24 v12, s18, v11")
        e(f"v_lshrrev_b32 v12, 16, v12")
        e(f"v_lshlrev_b32 v11, 4, v11")
        e(f"v_mad_u32_u24 v{4+n}, v12, s19, v11")
        if n % 4: e(f"v_subrev_u32 v{4+n}, {(n%4)*1024}, v{4+n}")
    e("v_lshrrev_b32 v12, 5, v2")
    e("v_bfe_u32 v13, v2, 2, 2")
    e("v_lshl_add_u32 v12, v12, 3, v13")
    e("v_mul_u32_u24 v11, 224, v12")
    e("v_and_b32 v12, 3, v2")
    e("v_lshl_add_u32 v11, v12, 3, v11")
    e("v_bfe_u32 v12, v2, 4, 1")
    e(f"v_mul_u32_u24 v12, {U_UP}, v12")
    e("v_add_u32 v11, v11, v12")
    e("s_lshr_b32 s18, s16, 1")
    e("s_mul_i32 s20, s18, 114688")
    e("s_mul_i32 s19, s15, 224")
    e("s_add_u32 s20, s20, s19")
    e("s_mul_i32 s21, s18, 7168")
    e("s_and_b32 s18, s16, 1")
    e(f"s_mul_i32 s19, s18, {U_UP}")
    e("s_add_u32 s21, s21, s19")
    e("s_add_u32 s22, s21, 4096")
    e(f"s_add_u32 s23, s21, {U_BUF}")
    e(f"s_add_u32 s33, s21, {U_BUF + 4096}")
    e("s_lshl_b32 s34, s14, 2")
    e("s_add_u32 s34, s34, s16")
    e("s_mul_i32 s35, s34, 114688")
    e("s_lshl_b32 s34, s34, 15")
    if WS_XN: e(f"s_add_u32 s34, s34, {hx(WS_XN)}")
    e("s_cmp_eq_u32 s18, 1")
    e("s_waitcnt lgkmcnt(0)")
    e("s_cselect_b32 s24, s6, s4")
    e("s_cselect_b32 s25, s7, s5")
    e(f"s_mov_b32 s26, {512*3584}")
    e("s_mov_b32 s27, 0x20000")
    srd(k, 28, 12, WS_SIZE)
    ACC = 128; AF = 16; BF = 48
    vm = Q(); lg = Q()
    def dma(buf, tag):
        e(f"s_mov_b32 m0, s{21 if buf == 0 else 23}")
        e("s_nop 0")
        for n in range(4):
            e(f"buffer_load_dwordx4 v{4+n}, s[24:27], s20 offen offset:{n*1024} lds"); vm.push(tag)
        e(f"s_mov_b32 m0, s{22 if buf == 0 else 33}")
        e("s_nop 0")
        for n in range(4, 7):
            e(f"buffer_load_dwordx4 v{4+n}, s[24:27], s20 offen offset:{(n-4)*1024} lds"); vm.push(tag)
        e(f"s_add_u32 s20, s20, {64*3584}")
    def ldB(buf, ks, tag):
        b = BF + 16 * buf + 4 * ks
        e(f"buffer_load_dwordx4 v[{b}:{b+3}], v3, s[28:31], s34 offen offset:{ks*1024}"); vm.push(tag)
        if ks == 3: e("s_add_u32 s34, s34, 4096")
    def rdA(buf, ks, t):
        a = AF + 4 * t
        for q in range(2):
            e(f"ds_read_b64_tr_b16 v[{a+2*q}:{a+2*q+1}], v11 offset:{buf*U_BUF + (16*ks+4*q)*224 + t*32}")
            lg.push(("A", t))
    for st in range(2):
        if st == 0:
            dma(0, ("D", 0))
            for ks in range(4): ldB(0, ks, ("B", 0, ks))
        else:
            for ks in range(3): ldB(1, ks, ("B", 1, ks))
            dma(1, ("D", 1))
            ldB(1, 3, ("B", 1, 3))
    for r in range(112): e(f"v_mov_b32 v{ACC+r}, 0")
    n = vm.need([("D", 0), ("B", 0, 3)])
    e(f"s_waitcnt vmcnt({n})")
    e("s_barrier")
    for t in range(7): rdA(0, 0, t)
    e("s_mov_b32 s36, 4")
    L = k.newlabel("uloop")
    k.label(L)
    snap = None
    for rep in range(2):
        emit = rep == 0
        saved = k.lines
        if not emit: k.lines = []
        for buf in range(2):
            st = 2 * rep + buf
            for ks in range(4):
                b = BF + 16 * buf + 4 * ks
                for t in range(7):
                    n = lg.need([("A", t)])
                    if n is not None: e(f"s_waitcnt lgkmcnt({n})")
                    a = AF + 4 * t
                    e(f"v_mfma_f32_32x32x16_bf16 v[{ACC+16*t}:{ACC+16*t+15}], v[{a}:{a+3}], v[{b}:{b+3}], v[{ACC+16*t}:{ACC+16*t+15}]")
                    if ks < 3: rdA(buf, ks + 1, t)
                    elif t == 3:
                        n = vm.need([("D", st + 1), ("B", st + 1, 3)])
                        lg.q = []
                        e(f"s_waitcnt vmcnt({n}) lgkmcnt(0)")
                        e("s_barrier")
                        for tt in range(4): rdA(1 - buf, 0, tt)
                        dma(buf, ("D", st + 2))
                    elif t > 3: rdA(1 - buf, 0, t)
                ldB(buf, ks, ("B", st + 2, ks))
        if emit:
            body = list(k.lines[len(saved) if False else 0:])
            first = [l for l in k.lines[k.lines.index(L + ":") + 1:]]
        else:
            assert k.lines == first, "loop not in steady state"
            k.lines = saved
    e("s_sub_u32 s36, s36, 1")
    e("s_cmp_lg_u32 s36, 0")
    e(f"s_cbranch_scc1 {L}")
    c1 = -2.0 * math.sqrt(2.0 / math.pi) * math.log2(math.e)
    c2 = c1 * 0.044715
    e(f"s_mov_b32 s38, {hx(f32bits(c1))}")
    e("s_mov_b32 s39, s38")
    e(f"s_mov_b32 s40, {hx(f32bits(c2))}")
    e("s_mov_b32 s41, s40")
    e("s_mov_b32 s42, 1.0")
    e("s_mov_b32 s43, 1.0")
    e(f"v_mov_b32 v12, s38")
    e(f"v_mov_b32 v13, s38")
    e("s_mul_i32 s37, s15, 7168")
    e("s_add_u32 s35, s35, s37")
    e(f"s_add_u32 s35, s35, {hx(WS_HF)}")
    e("s_add_u32 s37, s35, 4096")
    e("s_waitcnt vmcnt(0) lgkmcnt(0)")
    T = 16
    for t in range(7):
        A = ACC + 16 * t
        tt = T + 16 * (t % 2)
        for p in range(4):
            a = A + 2 * p
            e(f"v_pk_mul_f32 v[{tt+2*p}:{tt+2*p+1}], v[{a}:{a+1}], v[{a}:{a+1}]")
        for p in range(4):
            e(f"v_pk_fma_f32 v[{tt+2*p}:{tt+2*p+1}], v[{tt+2*p}:{tt+2*p+1}], s[40:41], v[12:13]")
        for p in range(4):
            a = A + 2 * p
            e(f"v_pk_mul_f32 v[{tt+2*p}:{tt+2*p+1}], v[{tt+2*p}:{tt+2*p+1}], v[{a}:{a+1}]")
        for r in range(8): e(f"v_exp_f32 v{tt+r}, v{tt+r}")
        for p in range(4):
            a = A + 2 * p
            e(f"v_pk_mul_f32 v[{a}:{a+1}], v[{a}:{a+1}], v[{a+8}:{a+9}]")
        for p in range(4):
            e(f"v_pk_add_f32 v[{tt+2*p}:{tt+2*p+1}], v[{tt+2*p}:{tt+2*p+1}], s[42:43]")
        for r in range(8): e(f"v_rcp_f32 v{tt+r}, v{tt+r}")
        e("s_nop 0")
        for p in range(4):
            a = A + 2 * p
            e(f"v_pk_mul_f32 v[{a}:{a+1}], v[{a}:{a+1}], v[{tt+2*p}:{tt+2*p+1}]")
        for p in range(4):
            a = A + 2 * p
            e(f"v_cvt_pk_bf16_f32 v{tt+8+p}, v{a}, v{a+1}")
        e(f"buffer_store_dwordx4 v[{tt+8}:{tt+11}], v3, s[28:31], s{35 if t < 4 else 37} offen offset:{(t%4)*1024}{store_mod}")

D_W = 17408
D_LDS = 4 * D_W
D_QS = 1088

def emit_down(k, wgreg="s2", wait_h=None, wait_o=None, load_mod=""):
    e = k.e
    e("s_load_dwordx2 s[4:5], s[0:1], 64")
    e("s_load_dwordx2 s[6:7], s[0:1], 32")
    e("s_load_dwordx2 s[8:9], s[0:1], 0")
    e("s_load_dwordx2 s[10:11], s[0:1], 72")
    e("s_load_dwordx2 s[12:13], s[0:1], 88")
    e(f"s_and_b32 s14, {wgreg}, 7")
    e("s_lshl_b32 s14, s14, 2")
    e(f"s_lshr_b32 s15, {wgreg}, 6")
    e("s_add_u32 s14, s14, s15")
    e(f"s_bfe_u32 s15, {wgreg}, 0x30003")
    e("v_lshrrev_b32 v1, 6, v0")
    e("v_and_b32 v2, 63, v0")
    e("v_readfirstlane_b32 s16, v1")
    e("v_lshlrev_b32 v3, 4, v2")
    e("v_add_u32 v4, 114688, v3")
    e("v_add_u32 v5, 32768, v3")
    e("v_lshrrev_b32 v8, 3, v2")
    e("v_and_b32 v9, 7, v2")
    e("v_lshlrev_b32 v10, 1, v8")
    e("v_and_b32 v10, 4, v10")
    e("v_xor_b32 v10, v10, v9")
    e("v_lshlrev_b32 v10, 4, v10")
    e("v_lshl_add_u32 v6, v8, 10, v10")
    e("v_add_u32 v7, 7168, v6")
    e("v_lshlrev_b32 v14, 4, v9")
    e("v_lshl_add_u32 v14, v8, 10, v14")
    e(f"v_mul_u32_u24 v15, {D_QS}, v9")
    e("v_lshl_add_u32 v15, v8, 4, v15")
    e(f"s_mul_i32 s17, s16, {D_W}")
    e("v_lshrrev_b32 v10, 5, v2")
    e("v_bfe_u32 v11, v2, 2, 2")
    e("v_lshl_add_u32 v10, v10, 2, v11")
    e("v_lshlrev_b32 v10, 7, v10")
    e("v_and_b32 v12, 1, v2")
    e("v_lshl_add_u32 v10, v12, 3, v10")
    e("v_add_u32 v10, s17, v10")
    e("v_bfe_u32 v12, v2, 4, 1")
    e("v_bfe_u32 v13, v2, 1, 1")
    e("v_lshl_add_u32 v12, v12, 1, v13")
    e("v_lshlrev_b32 v11, 1, v11")
    e("v_and_b32 v11, 4, v11")
    e("v_xor_b32 v12, v12, v11")
    e("v_lshl_add_u32 v8, v12, 4, v10")
    e("v_xor_b32 v12, 4, v12")
    e("v_lshl_add_u32 v9, v12, 4, v10")
    e("v_add_u32 v10, s17, v3")
    e(f"s_mul_i32 s18, s16, {28*16*1024}")
    e("s_lshl_b32 s20, s15, 7")
    e("s_add_u32 s18, s18, s20")
    e(f"s_mul_i32 s19, s14, {2*114688}")
    e(f"s_mul_i32 s21, s16, {28*1024}")
    e("s_add_u32 s19, s19, s21")
    e(f"s_add_u32 s19, s19, {hx(WS_HF)}")
    e("s_lshl_b32 s22, s16, 17")
    e("s_add_u32 s22, s22, s20")
    e("s_lshl_b32 s23, s14, 16")
    e("s_lshl_b32 s21, s16, 13")
    e("s_add_u32 s23, s23, s21")
    e(f"s_add_u32 s23, s23, {hx(WS_OF)}")
    e("s_lshl_b32 s44, s14, 16")
    e("s_lshl_b32 s21, s16, 14")
    e("s_add_u32 s44, s44, s21")
    e("s_add_u32 s44, s44, s20")
    e("s_add_u32 s45, s44, 8192")
    e("s_waitcnt lgkmcnt(0)")
    srd(k, 24, 4, 1792 * 1024)
    srd(k, 28, 12, WS_SIZE)
    srd(k, 32, 6, 512 * 1024)
    srd(k, 36, 8, 2048 * 1024)
    srd(k, 40, 10, 2048 * 1024)
    FA = 128; SAc = 192; AF = 16; BF = 32
    vm = Q(); lg = Q()
    R = 7
    def dma(slot, srdw, soff, tag):
        e(f"s_add_u32 m0, s17, {slot*2048}")
        e("s_nop 0")
        e(f"buffer_load_dwordx4 v6, s[{srdw}:{srdw+3}], {soff} offen lds"); vm.push(tag)
        e(f"buffer_load_dwordx4 v7, s[{srdw}:{srdw+3}], {soff} offen offset:1024 lds"); vm.push(tag)
        e(f"s_add_u32 {soff}, {soff}, 16384")
    def ldB(slot, v1, soff, tag):
        b = BF + 8 * slot
        e(f"buffer_load_dwordx4 v[{b}:{b+3}], v3, s[28:31], {soff} offen{load_mod}"); vm.push(tag)
        e(f"buffer_load_dwordx4 v[{b+4}:{b+7}], v{v1}, s[28:31], {soff} offen{load_mod}"); vm.push(tag)
        e(f"s_add_u32 {soff}, {soff}, 1024")
    def rdA(slot, ab):
        for nt in range(2):
            a = AF + 8 * ab + 4 * nt
            for q in range(2):
                e(f"ds_read_b64_tr_b16 v[{a+2*q}:{a+2*q+1}], v{8+nt} offset:{slot*2048 + q*1024}")
                lg.push(("A", ab))
    def mfmas(acc, ab, slot, first=False):
        for tbh in range(2):
            for nt in range(2):
                c = acc + 16 * (nt + 2 * tbh); a = AF + 8 * ab + 4 * nt; b = BF + 8 * slot + 4 * tbh
                cs = "0" if first else f"v[{c}:{c+15}]"
                e(f"v_mfma_f32_32x32x16_bf16 v[{c}:{c+15}], v[{a}:{a+3}], v[{b}:{b+3}], {cs}")
    for s in range(R): dma(s, 24, "s18", ("D", s))
    if wait_h: wait_h(k)
    for s in range(R): ldB(s, 4, "s19", ("B", s))
    for r in range(64): e(f"v_mov_b32 v{FA+r}, 0")
    e(f"s_waitcnt vmcnt({vm.need([('D', 0)])})")
    rdA(0, 0)
    e("s_mov_b32 s46, 4")
    L = k.newlabel("dloop")
    k.label(L)
    for s in range(R):
        ab = s % 2
        n_first = 2 * (R - 1 - s) + 4 * s
        n = min(n_first, 2 + 4 * (R - 2))
        e(f"s_waitcnt vmcnt({n}) lgkmcnt(0)")
        nxt = (s + 1) % R
        if s < R - 1:
            rdA(nxt, nxt % 2)
            mfmas(FA, ab, s)
        else:
            mfmas(FA, ab, s)
            rdA(0, 0)
        dma(s, 24, "s18", ("D", s + R))
        ldB(s, 4, "s19", ("B", s + R))
    e("s_sub_u32 s46, s46, 1")
    e("s_cmp_lg_u32 s46, 0")
    e(f"s_cbranch_scc1 {L}")
    e("s_waitcnt vmcnt(0) lgkmcnt(0)")
    e("buffer_load_dwordx4 v[96:99], v14, s[36:39], s44 offen")
    e("buffer_load_dwordx4 v[100:103], v14, s[36:39], s45 offen")
    def red_write(acc):
        for t in range(4):
            for qd in range(4):
                r = acc + 16 * t + 4 * qd
                e(f"ds_write_b128 v10, v[{r}:{r+3}] offset:{(4*t+qd)*D_QS}")
    def red_read(dst):
        for p in range(2):
            for src in range(4):
                for h in range(2):
                    r = BF + 32 * p + 8 * src + 4 * h
                    e(f"ds_read_b128 v[{r}:{r+3}], v11 offset:{src*D_W + h*512 + p*128}")
        for p in range(2):
            e(f"s_waitcnt lgkmcnt({8*(1-p)})")
            b = BF + 32 * p
            for j in range(0, 8, 2):
                e(f"v_pk_add_f32 v[{b+j}:{b+j+1}], v[{b+j}:{b+j+1}], v[{b+8+j}:{b+9+j}]")
                e(f"v_pk_add_f32 v[{b+16+j}:{b+17+j}], v[{b+16+j}:{b+17+j}], v[{b+24+j}:{b+25+j}]")
            for j in range(0, 8, 2):
                e(f"v_pk_add_f32 v[{dst+8*p+j}:{dst+8*p+j+1}], v[{b+j}:{b+j+1}], v[{b+16+j}:{b+17+j}]")
    e("s_lshr_b32 s47, s16, 1")
    e(f"s_mul_i32 s47, s47, {8*D_QS}")
    e("s_and_b32 s48, s16, 1")
    e("s_lshl_b32 s48, s48, 8")
    e("s_add_u32 s47, s47, s48")
    e("v_add_u32 v11, s47, v15")
    e("s_nop 4")
    red_write(FA)
    e("s_waitcnt lgkmcnt(0)")
    e("s_barrier")
    G = 104
    red_read(G)
    e("s_barrier")
    vm.q = []
    for s in range(8): dma(s, 32, "s22", ("D", s))
    e(f"s_mov_b32 s48, {hx(f32bits(-math.log2(math.e)))}")
    e("s_mov_b32 s49, s48")
    e("s_mov_b32 s50, 1.0")
    e("s_mov_b32 s51, 1.0")
    for j in range(0, 16, 2): e(f"v_pk_mul_f32 v[{FA+j}:{FA+j+1}], v[{G+j}:{G+j+1}], s[48:49]")
    for j in range(16): e(f"v_exp_f32 v{FA+j}, v{FA+j}")
    e("s_nop 0")
    for j in range(0, 16, 2): e(f"v_pk_add_f32 v[{FA+j}:{FA+j+1}], v[{FA+j}:{FA+j+1}], s[50:51]")
    for j in range(16): e(f"v_rcp_f32 v{FA+j}, v{FA+j}")
    e("s_nop 0")
    for j in range(0, 16, 2): e(f"v_pk_mul_f32 v[{G+j}:{G+j+1}], v[{G+j}:{G+j+1}], v[{FA+j}:{FA+j+1}]")
    if wait_o: wait_o(k)
    for s in range(8): ldB(s, 5, "s23", ("B", s))
    lg.q = []
    e(f"s_waitcnt vmcnt({vm.need([('D', 7)])})")
    rdA(0, 0)
    for s in range(8):
        if s < 7: rdA(s + 1, (s + 1) % 2)
        n = vm.need([("B", s)]); m = lg.need([("A", s % 2)]) if s == 7 else 4
        if s < 7: lg.q = lg.q[-4:]
        e(f"s_waitcnt vmcnt({n}) lgkmcnt({m})")
        mfmas(SAc, s % 2, s, first=(s == 0))
    e("s_nop 11")
    red_write(SAc)
    e("s_waitcnt lgkmcnt(0)")
    e("s_barrier")
    red_read(FA)
    e("s_mov_b32 s48, 0xffff0000")
    for p in range(2):
        for r in range(4):
            x = 96 + 4 * p + r
            e(f"v_lshlrev_b32 v{16+2*r}, 16, v{x}")
            e(f"v_and_b32 v{17+2*r}, s48, v{x}")
        for r in range(4):
            j = 8 * p + 2 * r
            e(f"v_pk_fma_f32 v[{16+2*r}:{17+2*r}], v[{FA+j}:{FA+j+1}], v[{G+j}:{G+j+1}], v[{16+2*r}:{17+2*r}]")
        for r in range(4):
            e(f"v_cvt_pk_bf16_f32 v{24+4*p+r}, v{16+2*r}, v{17+2*r}")
        e(f"buffer_store_dwordx4 v[{24+4*p}:{27+4*p}], v14, s[40:43], s{44+p} offen")
    e("s_endpgm")

def gen_up(name="up_kernel"):
    k = Kernel(name)
    L_end = k.newlabel("end")
    k.e("s_cmp_ge_u32 s2, 256")
    k.e(f"s_cbranch_scc1 {L_end}")
    emit_up(k)
    k.label(L_end)
    k.e("s_endpgm")
    return k

def gen_down(name="down_kernel"):
    k = Kernel(name)
    L_end = k.newlabel("end")
    k.e("s_cmp_ge_u32 s2, 256")
    k.e(f"s_cbranch_scc1 {L_end}")
    emit_down(k)
    k.label(L_end)
    k.e("s_endpgm")
    return k

if __name__ == "__main__":
    assert all((c * 4682) >> 16 == c // 14 for c in range(448))
    for k in (gen_up(), gen_down()):
        for x in k.check_hazards(): print(x)
        for x in k.check_waits(): print(x)
        print(k.name, k.max_regs(), len(k.lines))
```

```python
from common import *

K1_WQ = 0
K1_XN = 65536
K1_WKV = 65536 + 2 * 33792
K1_LDS = K1_WKV + 16384

def gen_k1(name="ln_qkv_kernel"):
    k = Kernel(name)
    e = k.e
    L_end = k.newlabel("end")
    e("s_cmp_ge_u32 s2, 256")
    e(f"s_cbranch_scc1 {L_end}")
    e("s_load_dwordx4 s[4:7], s[0:1], 0")
    e("s_load_dwordx4 s[8:11], s[0:1], 16")
    e("s_load_dwordx2 s[12:13], s[0:1], 88")
    e("s_and_b32 s14, s2, 7")
    e("s_lshl_b32 s14, s14, 2")
    e("s_lshr_b32 s15, s2, 6")
    e("s_add_u32 s14, s14, s15")
    e("s_lshr_b32 s15, s2, 3")
    e("s_and_b32 s15, s15, 7")
    e("v_lshrrev_b32 v1, 6, v0")
    e("v_and_b32 v2, 63, v0")
    e("v_readfirstlane_b32 s16, v1")
    e("v_lshrrev_b32 v3, 3, v2")
    e("v_and_b32 v4, 7, v2")
    e("v_lshlrev_b32 v5, 10, v3")
    e("v_lshl_add_u32 v6, v4, 4, v5")
    e("v_lshlrev_b32 v7, 1, v3")
    e("v_and_b32 v7, 4, v7")
    e("v_xor_b32 v7, v7, v4")
    e("v_lshl_add_u32 v7, v7, 4, v5")
    e("v_lshlrev_b32 v8, 4, v2")
    e("s_lshl_b32 s17, s14, 16")
    e("s_lshl_b32 s18, s16, 13")
    e("s_add_u32 s17, s17, s18")
    e("s_waitcnt lgkmcnt(0)")
    srd(k, 20, 4, 2048 * 1024)
    srd(k, 24, 6, 512 * 1024)
    X = 16
    for m in range(8):
        e(f"buffer_load_dwordx4 v[{X+4*m}:{X+4*m+3}], v6, s[20:23], s17 offen offset:{m*128}")
    e("s_lshl_b32 s18, s16, 16")
    e("s_lshl_b32 s19, s15, 7")
    e("s_add_u32 s18, s18, s19")
    e("s_lshl_b32 s19, s16, 13")
    for n in range(8):
        e(f"s_mov_b32 m0, s19")
        e(f"s_add_u32 s19, s19, 1024")
        e(f"buffer_load_dwordx4 v7, s[24:27], s18 offen lds")
        if n < 7: e(f"s_add_u32 s18, s18, 8192")
    L_nokv = k.newlabel("nokv")
    e("s_cmp_ge_u32 s15, 4")
    e(f"s_cbranch_scc1 {L_nokv}")
    e("s_cmp_ge_u32 s15, 2")
    e("s_cselect_b32 s28, s10, s8")
    e("s_cselect_b32 s29, s11, s9")
    e("s_mov_b32 s30, 16384")
    e("s_mov_b32 s31, 0x20000")
    e("s_lshl_b32 s18, s16, 11")
    e(f"s_add_u32 s19, s18, {K1_WKV}")
    e("s_mov_b32 m0, s19")
    e("s_nop 0")
    e("buffer_load_dwordx4 v8, s[28:31], s18 offen lds")
    e("buffer_load_dwordx4 v8, s[28:31], s18 offen offset:1024 lds")
    k.label(L_nokv)
    srd(k, 32, 12, WS_SIZE)
    e("s_lshr_b32 s18, s16, 2")
    e("s_mul_i32 s18, s18, 33792")
    e("s_and_b32 s19, s16, 3")
    e("s_lshl_b32 s19, s19, 7")
    e("s_add_u32 s18, s18, s19")
    e(f"s_add_u32 s18, s18, {K1_XN}")
    e("v_mul_u32_u24 v9, 528, v4")
    e("v_lshl_add_u32 v9, v3, 4, v9")
    e("v_add_u32 v9, s18, v9")
    e("s_mov_b32 s36, 0xffff0000")
    F = 48
    for m in range(8):
        e(f"s_waitcnt vmcnt({8 + 7 - m})")
        for q in range(4):
            r = X + 4 * m + q
            e(f"v_lshlrev_b32 v{F+8*m+2*q}, 16, v{r}")
            e(f"v_and_b32 v{F+8*m+2*q+1}, s36, v{r}")
    A = 112
    for a in range(4):
        e(f"v_pk_add_f32 v[{A+2*a}:{A+2*a+1}], v[{F+2*a}:{F+2*a+1}], v[{F+8+2*a}:{F+8+2*a+1}]")
    for m in range(2, 8):
        for a in range(4):
            e(f"v_pk_add_f32 v[{A+2*a}:{A+2*a+1}], v[{A+2*a}:{A+2*a+1}], v[{F+8*m+2*a}:{F+8*m+2*a+1}]")
    def reduce8(A, T):
        e(f"v_pk_add_f32 v[{A}:{A+1}], v[{A}:{A+1}], v[{A+2}:{A+3}]")
        e(f"v_pk_add_f32 v[{A+4}:{A+5}], v[{A+4}:{A+5}], v[{A+6}:{A+7}]")
        e(f"v_pk_add_f32 v[{A}:{A+1}], v[{A}:{A+1}], v[{A+4}:{A+5}]")
        e(f"v_add_f32 v{A}, v{A}, v{A+1}")
        e("s_nop 1")
        e(f"v_add_f32_dpp v{A}, v{A}, v{A} quad_perm:[1,0,3,2] row_mask:0xf bank_mask:0xf")
        e("s_nop 1")
        e(f"v_add_f32_dpp v{A}, v{A}, v{A} quad_perm:[2,3,0,1] row_mask:0xf bank_mask:0xf")
        e("s_nop 1")
        e(f"v_add_f32_dpp v{A}, v{A}, v{A} row_half_mirror row_mask:0xf bank_mask:0xf")
    reduce8(A, 0)
    e(f"v_mul_f32 v120, {hx(f32bits(-1.0/512))}, v{A}")
    e(f"v_mov_b32 v121, v120")
    for m in range(8):
        for a in range(4):
            T = X + 2 * ((4 * m + a) % 16)
            e(f"v_pk_add_f32 v[{T}:{T+1}], v[{F+8*m+2*a}:{F+8*m+2*a+1}], v[120:121]")
        for a in range(4):
            T = X + 2 * ((4 * m + a) % 16)
            if m == 0: e(f"v_pk_mul_f32 v[{A+2*a}:{A+2*a+1}], v[{T}:{T+1}], v[{T}:{T+1}]")
            else: e(f"v_pk_fma_f32 v[{A+2*a}:{A+2*a+1}], v[{T}:{T+1}], v[{T}:{T+1}], v[{A+2*a}:{A+2*a+1}]")
    reduce8(A, 0)
    e(f"v_mul_f32 v{A}, {hx(f32bits(1.0/512))}, v{A}")
    e(f"v_cvt_pk_bf16_f32 v{A}, v{A}, v120")
    e(f"v_and_b32 v121, s36, v{A}")
    e(f"v_lshlrev_b32 v{A}, 16, v{A}")
    e(f"v_add_f32 v{A}, {hx(f32bits(1e-5))}, v{A}")
    e(f"v_cvt_pk_bf16_f32 v{A}, v{A}, v{A}")
    e(f"v_lshlrev_b32 v{A}, 16, v{A}")
    e(f"v_sqrt_f32 v{A}, v{A}")
    e("s_nop 0")
    e(f"v_cvt_pk_bf16_f32 v{A}, v{A}, v{A}")
    e(f"v_lshlrev_b32 v{A}, 16, v{A}")
    e(f"v_rcp_f32 v122, v{A}")
    e("s_nop 0")
    e("v_mov_b32 v123, v122")
    e("v_mul_f32 v120, v121, v122")
    e("v_mov_b32 v121, v120")
    for m in range(8):
        for a in range(4):
            p = F + 8 * m + 2 * a
            e(f"v_pk_fma_f32 v[{p}:{p+1}], v[{p}:{p+1}], v[122:123], v[120:121]")
        for a in range(4):
            p = F + 8 * m + 2 * a
            e(f"v_cvt_pk_bf16_f32 v{X+4*m+a}, v{p}, v{p+1}")
        e(f"ds_write_b128 v9, v[{X+4*m}:{X+4*m+3}] offset:{m*4224}")
    e("v_and_b32 v10, 31, v2")
    e("v_lshrrev_b32 v11, 5, v2")
    e("v_mul_u32_u24 v12, 528, v11")
    e("v_lshl_add_u32 v12, v10, 4, v12")
    e("v_bfe_u32 v13, v2, 2, 2")
    e("v_and_b32 v14, 3, v2")
    e("v_lshl_add_u32 v15, v11, 3, v13")
    e("s_waitcnt vmcnt(0) lgkmcnt(0)")
    e("s_barrier")
    L_kv = k.newlabel("kv"); L_cp = k.newlabel("cp")
    e("s_cmp_ge_u32 s16, 6")
    e(f"s_cbranch_scc1 {L_cp}")
    e("s_cmp_ge_u32 s16, 4")
    e(f"s_cbranch_scc1 {L_kv}")
    e("s_and_b32 s18, s16, 1")
    e("s_mul_i32 s19, s18, 33792")
    e(f"s_add_u32 s19, s19, {K1_XN}")
    e("v_add_u32 v12, s19, v12")
    e("s_lshr_b32 s19, s16, 1")
    e("s_lshl_b32 s37, s19, 2")
    e("v_bfe_u32 v1, v2, 4, 1")
    e("v_lshlrev_b32 v1, 1, v1")
    e("v_lshrrev_b32 v3, 1, v14")
    e("v_add3_u32 v1, v1, v3, s37")
    e("v_lshlrev_b32 v3, 1, v13")
    e("v_and_b32 v3, 4, v3")
    e("v_xor_b32 v1, v1, v3")
    e("v_lshlrev_b32 v1, 4, v1")
    e("v_lshl_add_u32 v1, v15, 7, v1")
    e("v_and_b32 v3, 1, v14")
    e("v_lshl_add_u32 v1, v3, 3, v1")
    ACC = 48; AF = 64; BF = 96; D = 6
    def chain(a_addr, a_s, a_q, swap):
        def rd(s):
            a = AF + 4 * (s % 8); b = BF + 4 * (s % 8)
            e(f"ds_read_b64_tr_b16 v[{a}:{a+1}], v{a_addr} offset:{s*a_s}")
            e(f"ds_read_b64_tr_b16 v[{a+2}:{a+3}], v{a_addr} offset:{s*a_s+a_q}")
            e(f"ds_read_b128 v[{b}:{b+3}], v12 offset:{s*1056}")
        DD = 5
        for s in range(DD): rd(s)
        for s in range(32):
            rem = min(31, s + DD - 1) - s
            e(f"s_waitcnt lgkmcnt({3*rem})")
            a = AF + 4 * (s % 8); b = BF + 4 * (s % 8)
            x, y = (b, a) if swap else (a, b)
            c = "0" if s == 0 else f"v[{ACC}:{ACC+15}]"
            e(f"v_mfma_f32_32x32x16_bf16 v[{ACC}:{ACC+15}], v[{x}:{x+3}], v[{y}:{y+3}], {c}")
            if s + DD < 32: rd(s + DD)
    chain(1, 2048, 512, False)
    e("s_lshl_b32 s37, s14, 1")
    e("s_add_u32 s37, s37, s18")
    e("s_lshl_b32 s37, s37, 15")
    e("s_lshl_b32 s38, s15, 12")
    e("s_add_u32 s37, s37, s38")
    e("s_lshl_b32 s38, s19, 11")
    e("s_add_u32 s37, s37, s38")
    e(f"s_add_u32 s37, s37, {hx(WS_QF)}")
    e(f"s_mov_b32 s38, {hx(f32bits(QSCALE))}")
    e(f"s_mov_b32 s39, s38")
    e("s_nop 3")
    for r in range(0, 16, 2):
        e(f"v_pk_mul_f32 v[{ACC+r}:{ACC+r+1}], v[{ACC+r}:{ACC+r+1}], s[38:39]")
    for r in range(8):
        e(f"v_cvt_pk_bf16_f32 v{16+r}, v{ACC+2*r}, v{ACC+2*r+1}")
    e("buffer_store_dwordx4 v[16:19], v8, s[32:35], s37 offen")
    e("buffer_store_dwordx4 v[20:23], v8, s[32:35], s37 offen offset:1024")
    e("s_endpgm")
    k.label(L_kv)
    e("s_cmp_lg_u32 s16, 4")
    e(f"s_cbranch_scc1 {L_end}")
    e("s_cmp_ge_u32 s15, 4")
    e(f"s_cbranch_scc1 {L_end}")
    e("s_and_b32 s18, s15, 1")
    e("s_mul_i32 s19, s18, 33792")
    e(f"s_add_u32 s19, s19, {K1_XN}")
    e("v_add_u32 v12, s19, v12")
    e("v_lshlrev_b32 v1, 5, v15")
    e("v_lshl_add_u32 v1, v14, 3, v1")
    e(f"v_add_u32 v1, {K1_WKV}, v1")
    e("s_lshl_b32 s37, s14, 1")
    e("s_add_u32 s37, s37, s18")
    e("s_lshr_b32 s38, s37, 3")
    e("s_lshl_b32 s38, s38, 14")
    e("s_and_b32 s37, s37, 7")
    e("s_lshl_b32 s37, s37, 10")
    e("s_add_u32 s37, s37, s38")
    e(f"s_add_u32 s37, s37, {hx(WS_KV)}")
    L_v = k.newlabel("v")
    e("s_cmp_ge_u32 s15, 2")
    e(f"s_cbranch_scc1 {L_v}")
    chain(1, 512, 128, False)
    e("v_and_b32 v3, 0x33, v2")
    e("v_bfe_u32 v4, v2, 2, 1")
    e("v_lshl_or_b32 v3, v4, 3, v3")
    e("v_bfe_u32 v4, v2, 3, 1")
    e("v_lshl_or_b32 v3, v4, 2, v3")
    e("v_lshlrev_b32 v3, 4, v3")
    e("s_nop 5")
    for r in range(4):
        e(f"v_cvt_pk_bf16_f32 v{16+r}, v{ACC+2*r}, v{ACC+2*r+1}")
    e("buffer_store_dwordx4 v[16:19], v3, s[32:35], s37 offen")
    e("s_endpgm")
    k.label(L_v)
    chain(1, 512, 128, True)
    e("v_and_b32 v3, 15, v2")
    e("v_lshlrev_b32 v3, 4, v3")
    e("v_lshl_add_u32 v3, v11, 8, v3")
    e("v_bfe_u32 v4, v2, 4, 1")
    e("v_lshl_add_u32 v3, v4, 9, v3")
    e("v_cmp_eq_u32 vcc, 1, v4")
    e("s_add_u32 s37, s37, 8192")
    e("s_nop 4")
    for r in range(8):
        e(f"v_cvt_pk_bf16_f32 v{16+r}, v{ACC+2*r}, v{ACC+2*r+1}")
    for r in range(4):
        e(f"v_cndmask_b32 v{16+r}, v{16+r}, v{20+r}, vcc")
    e("buffer_store_dwordx4 v[16:19], v3, s[32:35], s37 offen")
    e("s_endpgm")
    k.label(L_cp)
    e("s_sub_u32 s18, s16, 6")
    e("s_mul_i32 s19, s18, 33792")
    e("s_mul_i32 s37, s15, 4224")
    e("s_add_u32 s19, s19, s37")
    e(f"s_add_u32 s19, s19, {K1_XN}")
    e("v_add_u32 v12, s19, v12")
    for q in range(4):
        e(f"ds_read_b128 v[{16+4*q}:{19+4*q}], v12 offset:{q*1056}")
    e("s_lshl_b32 s37, s14, 1")
    e("s_add_u32 s37, s37, s18")
    e("s_lshl_b32 s37, s37, 15")
    e("s_lshl_b32 s38, s15, 12")
    e("s_add_u32 s37, s37, s38")
    if WS_XN: e(f"s_add_u32 s37, s37, {hx(WS_XN)}")
    for q in range(4):
        e(f"s_waitcnt lgkmcnt({3-q})")
        e(f"buffer_store_dwordx4 v[{16+4*q}:{19+4*q}], v8, s[32:35], s37 offen offset:{q*1024}")
    k.label(L_end)
    e("s_endpgm")
    return k

if __name__ == "__main__":
    k = gen_k1()
    for x in k.check_hazards(): print(x)
    for x in k.check_waits(): print(x)
    print(k.max_regs(), len(k.lines))
```

```python
import sys, re
from common import *
import k1, attn, ffn

REF = open("recurrent_scan__grouped_kv_mqa__geglu_ffn__prompt.s.ref").read()
HEAD = "".join(l + "\n" for l in REF.split("\n") if l.startswith(";") and "@launch" not in l and "Override launch" not in l and "grid=ceil" not in l)

def assemble(launches, kernels, path):
    out = HEAD
    for n, g, b, l in launches:
        out += f"; @launch kernel={n} grid=({g},1,1) block=({b},1,1) lds={l}\n"
    out += '.amdgcn_target "amdgcn-amd-amdhsa--gfx950"\n.text\n'
    bad = False
    for k in kernels:
        for x in k.check_hazards(): print(k.name, x); bad = True
        for x in k.check_waits(): print(k.name, x); bad = True
        out += kernel_header(k.name) + k.text()
    out += '.section .rodata,"a"\n'
    for k in kernels:
        v, s, a = k.max_regs()
        v = max(v, getattr(k, "min_vgpr", 0))
        out += ".p2align 6\n" + kernel_desc(k.name, v, max(s, 16), a)
    open(path, "w").write(out)
    if bad: print("!!! static check problems")

def v1(path):
    ks = [k1.gen_k1(), attn.gen_attn(), ffn.gen_up(), ffn.gen_down()]
    assemble([("ln_qkv_kernel", 256, 512, k1.K1_LDS), ("attn_kernel", 256, 256, attn.A_LDS),
              ("up_kernel", 256, 256, ffn.U_LDS), ("down_kernel", 256, 256, ffn.D_LDS)], ks, path)

if __name__ == "__main__":
    which = sys.argv[1] if len(sys.argv) > 1 else "v1"
    path = sys.argv[2] if len(sys.argv) > 2 else "recurrent_scan__grouped_kv_mqa__geglu_ffn__prompt.s"
    globals()[which](path)
```

```python
from common import *

A_RING = 0
A_ONES = 65536
A_LDS = 65536 + 8192

def emit_attn(k, wgreg="s2", publish=None, store_mod=""):
    e = k.e
    prof_begin(k)
    e("s_load_dwordx2 s[12:13], s[0:1], 88")
    e(f"s_and_b32 s14, {wgreg}, 7")
    e("s_lshl_b32 s14, s14, 2")
    e(f"s_lshr_b32 s15, {wgreg}, 6")
    e("s_add_u32 s14, s14, s15")
    e(f"s_lshr_b32 s15, {wgreg}, 3")
    e("s_and_b32 s15, s15, 7")
    e("v_lshrrev_b32 v1, 6, v0")
    e("v_and_b32 v2, 63, v0")
    e("v_readfirstlane_b32 s16, v1")
    e("v_lshlrev_b32 v12, 4, v2")
    e("v_mov_b32 v3, 0xdddd")
    e("s_lshl_b32 s17, s14, 16")
    e("s_lshl_b32 s18, s15, 12")
    e("s_add_u32 s17, s17, s18")
    e("s_lshl_b32 s18, s16, 10")
    e("s_add_u32 s17, s17, s18")
    e("s_lshl_b32 s19, s16, 12")
    e("s_waitcnt lgkmcnt(0)")
    srd(k, 20, 12, WS_SIZE)
    e(f"s_add_u32 s24, s12, {hx(WS_KV)}")
    e("s_addc_u32 s25, s13, 0")
    e("s_mov_b32 s26, 0x20000")
    e("s_mov_b32 s27, 0x20000")
    def dma(soff, m0v):
        e(f"s_mov_b32 m0, {m0v}")
        e("s_nop 0")
        for q in range(4):
            e(f"buffer_load_dwordx4 v12, s[24:27], {soff} offen offset:{q*1024} lds")
    dma("s19", "s19")
    e(f"s_add_u32 s28, s17, {hx(WS_QF)}")
    e(f"s_add_u32 s29, s28, 32768")
    e("buffer_load_dwordx4 v[4:7], v12, s[20:23], s28 offen")
    e("buffer_load_dwordx4 v[8:11], v12, s[20:23], s29 offen")
    e("s_add_u32 s30, s19, 16384")
    dma("s30", "s30")
    e("s_add_u32 s30, s30, 16384")
    dma("s30", "s30")
    e("s_add_u32 s30, s30, 16384")
    for r in range(4): e(f"v_mov_b32 v{16+r}, 0x3f803f80")
    e("s_lshl_b32 s18, s16, 11")
    e(f"s_add_u32 s18, s18, {A_ONES}")
    e("v_add_u32 v13, s18, v12")
    e("ds_write_b128 v13, v[16:19]")
    e("ds_write_b128 v13, v[16:19] offset:1024")
    e("v_and_b32 v13, 15, v2")
    e("v_lshlrev_b32 v13, 4, v13")
    e("v_lshrrev_b32 v14, 5, v2")
    e("v_lshl_add_u32 v13, v14, 8, v13")
    e("v_bfe_u32 v14, v2, 4, 1")
    e(f"v_mov_b32 v15, {A_ONES - 8192}")
    e("v_mad_u32_u24 v13, v14, v15, v13")
    e("v_xor_b32 v14, 1, v14")
    SA, SB, O0, O1 = 16, 32, 48, 64
    KF = [80, 84]; VF = [88, 96]
    vKc, vKn, vVc, vVn = 104, 105, 106, 107
    e(f"v_mov_b32 v{vKc}, v12")
    e(f"v_add_u32 v{vKn}, 16384, v12")
    e(f"v_mov_b32 v{vVc}, v13")
    e("s_mov_b32 s31, 16384")
    e(f"v_mad_u32_u24 v{vVn}, v14, s31, v13")
    for r in range(16):
        e(f"v_mov_b32 v{O0+r}, 0")
        e(f"v_mov_b32 v{O1+r}, 0")
    S = [SA, SB]; O = [O0, O1]; Q = [4, 8]
    def rdK(t):
        a = vKc if t < 8 else vKn
        e(f"ds_read_b128 v[{KF[t%2]}:{KF[t%2]+3}], v{a} offset:{(t%8)*1024}")
    def rdV(t):
        a = vVc if t < 8 else vVn
        for c in range(2):
            e(f"ds_read_b128 v[{VF[t%2]+4*c}:{VF[t%2]+4*c+3}], v{a} offset:{8192+(t%8)*1024+c*512}")
    def ex(b, lo, hi):
        for r in range(lo, hi): e(f"v_exp_f32 v{b+r}, v{b+r}")
    def qk(X, t, q):
        e(f"v_mfma_f32_32x32x16_bf16 v[{X}:{X+15}], v[{KF[t%2]}:{KF[t%2]+3}], v[{Q[q]}:{Q[q]+3}], 0")
    stamp(k, 1)
    e("s_waitcnt vmcnt(8) lgkmcnt(0)")
    e("s_barrier")
    stamp(k, 2)
    e("s_waitcnt lgkmcnt(0)") if PROF else None
    rdK(0); rdK(1); rdV(0)
    e("s_waitcnt lgkmcnt(3)")
    qk(SA, 0, 0)
    qk(SB, 0, 1)
    e("s_nop 10")
    ex(SA, 0, 5)
    e("s_mov_b32 s33, 8")
    L_loop = k.newlabel("aloop")
    k.label(L_loop)
    for t in range(8):
        for q in range(2):
            X, Y = S[q], S[1 - q]
            V0, V1 = VF[t % 2], VF[t % 2] + 4
            ex(X, 5, 7)
            if q == 0:
                e("s_waitcnt lgkmcnt(0)")
                rdV(t + 1)
            else:
                rdK(t + 2)
            ex(X, 7, 10)
            e(f"v_smfmac_f32_32x32x32_bf16 v[{O[q]}:{O[q]+15}], v[{V0}:{V0+3}], v[{X}:{X+7}], v3")
            ex(X, 10, 13)
            if t == 5 and q == 0:
                e("s_waitcnt vmcnt(4)")
                e("s_barrier")
                e("s_and_b32 s34, s30, 0xffff")
                dma("s30", "s34")
                e("s_add_u32 s30, s30, 16384")
            ex(X, 13, 16)
            ex(Y, 0, 2)
            e(f"v_smfmac_f32_32x32x32_bf16 v[{O[q]}:{O[q]+15}], v[{V1}:{V1+3}], v[{X+8}:{X+15}], v3")
            ex(Y, 2, 5)
            qk(X, t + 1, q)
    e("s_add_u32 s31, s31, 16384")
    e("s_and_b32 s31, s31, 0xffff")
    e(f"v_mov_b32 v{vKc}, v{vKn}")
    e(f"v_mov_b32 v{vVc}, v{vVn}")
    e(f"v_add_u32 v{vKn}, s31, v12")
    e(f"v_mad_u32_u24 v{vVn}, v14, s31, v13")
    e("s_sub_u32 s33, s33, 1")
    e("s_cmp_lg_u32 s33, 0")
    e(f"s_cbranch_scc1 {L_loop}")
    stamp(k, 3)
    e("s_waitcnt lgkmcnt(0)")
    e("s_nop 3")
    L_fin = k.newlabel("afin"); L_slow = k.newlabel("aslow")
    e(f"s_mov_b32 s36, {hx(f32bits(2.0**-60))}")
    e(f"s_mov_b32 s37, {hx(f32bits(2.0**60))}")
    e(f"s_mov_b32 s38, {hx(f32bits(2.0**120))}")
    for q in range(2):
        o = O[q]
        e(f"v_max3_f32 v{16+q}, abs(v{o}), abs(v{o+1}), abs(v{o+2})")
        e(f"v_max3_f32 v{16+q}, v{16+q}, abs(v{o+3}), abs(v{o+4})")
        e(f"v_max3_f32 v{16+q}, v{16+q}, abs(v{o+5}), abs(v{o+6})")
        e(f"v_max_f32 v{16+q}, v{16+q}, abs(v{o+7})".replace("v_max_f32", "v_max_f32_e64"))
    for q in range(2):
        o = O[q]
        e(f"v_add_f32 v{18+q}, v{o}, v{o+1}")
        for r in range(2, 8): e(f"v_add_f32 v{18+q}, v{18+q}, v{o+r}")
    e(f"v_cmp_ge_f32 s[40:41], v{O0+8}, s36")
    e(f"v_cmp_le_f32 s[42:43], v{O0+8}, s37")
    e(f"v_cmp_ge_f32 s[44:45], v{O1+8}, s36")
    e(f"v_cmp_le_f32 s[46:47], v{O1+8}, s37")
    e(f"v_cmp_le_f32 s[48:49], v16, s38")
    e(f"v_cmp_le_f32 s[50:51], v17, s38")
    e(f"v_cmp_o_f32 s[52:53], v18, v19")
    e("s_and_b64 s[40:41], s[40:41], s[42:43]")
    e("s_and_b64 s[44:45], s[44:45], s[46:47]")
    e("s_and_b64 s[48:49], s[48:49], s[50:51]")
    e("s_and_b64 s[40:41], s[40:41], s[44:45]")
    e("s_and_b64 s[48:49], s[48:49], s[52:53]")
    e("s_and_b64 s[40:41], s[40:41], s[48:49]")
    e("s_cmp_eq_u64 s[40:41], -1")
    e(f"s_cbranch_scc0 {L_slow}")
    k.label(L_fin)
    e(f"s_add_u32 s28, s17, {hx(WS_OF)}")
    e(f"s_add_u32 s29, s28, 32768")
    e(f"v_rcp_f32 v16, v{O0+8}")
    e(f"v_rcp_f32 v18, v{O1+8}")
    e("s_nop 0")
    e("v_mov_b32 v17, v16")
    e("v_mov_b32 v19, v18")
    for q in range(2):
        o = O[q]
        for r in range(0, 8, 2):
            e(f"v_pk_mul_f32 v[{o+r}:{o+r+1}], v[{o+r}:{o+r+1}], v[{16+2*q}:{17+2*q}]")
        for r in range(4):
            e(f"v_cvt_pk_bf16_f32 v{20+4*q+r}, v{o+2*r}, v{o+2*r+1}")
        e(f"buffer_store_dwordx4 v[{20+4*q}:{23+4*q}], v12, s[20:23], s{28+q} offen{store_mod}")
    if publish: publish(k)
    e("s_endpgm")

    k.label(L_slow)
    e("s_waitcnt vmcnt(0)")
    e("v_and_b32 v13, 15, v2")
    e("v_lshlrev_b32 v13, 4, v13")
    e("v_lshrrev_b32 v15, 5, v2")
    e("v_lshl_add_u32 v13, v15, 8, v13")
    e("v_add_u32 v13, 8192, v13")
    e("v_cmp_eq_u32 s[54:55], 0, v14")
    e("v_mov_b32 v108, 0x3f803f80")
    e("v_mov_b32 v110, 0xff800000")
    e("v_mov_b32 v111, 0xff800000")
    for r in range(16):
        e(f"v_mov_b32 v{O0+r}, 0")
        e(f"v_mov_b32 v{O1+r}, 0")
    e("s_mov_b32 s33, 0")
    L_sl = k.newlabel("asl")
    k.label(L_sl)
    e("s_lshr_b32 s34, s33, 3")
    e("s_lshl_b32 s34, s34, 14")
    e("s_and_b32 s35, s33, 7")
    e("s_lshl_b32 s35, s35, 10")
    e("s_add_u32 s34, s34, s35")
    e("buffer_load_dwordx4 v[80:83], v12, s[24:27], s34 offen")
    e("buffer_load_dwordx4 v[88:91], v13, s[24:27], s34 offen")
    e("buffer_load_dwordx4 v[92:95], v13, s[24:27], s34 offen offset:512")
    e("s_waitcnt vmcnt(0)")
    for r in range(8): e(f"v_cndmask_b32 v{88+r}, v{88+r}, v108, s[54:55]")
    for q in range(2):
        X = S[q]; m = 110 + q; o = O[q]
        e(f"v_mfma_f32_32x32x16_bf16 v[{X}:{X+15}], v[80:83], v[{Q[q]}:{Q[q]+3}], 0")
        e("s_nop 11")
        e(f"v_max3_f32 v112, v{X}, v{X+1}, v{X+2}")
        for r in range(3, 15, 2): e(f"v_max3_f32 v112, v112, v{X+r}, v{X+r+1}")
        e(f"v_max_f32 v112, v112, v{X+15}")
        e("v_mov_b32 v113, v112")
        e("s_nop 1")
        e("v_permlane32_swap_b32 v112, v113")
        e("s_nop 1")
        e("v_max3_f32 v112, v112, v113, v" + str(m))
        e(f"v_cmp_eq_f32 vcc, v{m}, v112")
        e(f"v_sub_f32 v113, v{m}, v112")
        e("v_exp_f32 v113, v113")
        e("s_nop 0")
        e("v_cndmask_b32 v113, v113, 1.0, vcc")
        e(f"v_mov_b32 v{m}, v112")
        e("v_cmp_eq_f32 vcc, 0xff800000, v112")
        e("s_nop 1")
        e("v_cndmask_b32 v112, v112, 0, vcc")
        for r in range(16): e(f"v_mul_f32 v{o+r}, v113, v{o+r}")
        for r in range(16): e(f"v_sub_f32 v{X+r}, v{X+r}, v112")
        for r in range(16): e(f"v_exp_f32 v{X+r}, v{X+r}")
        e("s_nop 1")
        e(f"v_smfmac_f32_32x32x32_bf16 v[{o}:{o+15}], v[88:91], v[{X}:{X+7}], v3")
        e(f"v_smfmac_f32_32x32x32_bf16 v[{o}:{o+15}], v[92:95], v[{X+8}:{X+15}], v3")
    e("s_nop 11")
    e("s_add_u32 s33, s33, 1")
    e("s_cmp_lt_u32 s33, 64")
    e(f"s_cbranch_scc1 {L_sl}")
    e(f"s_branch {L_fin}")

def gen_attn(name="attn_kernel"):
    k = Kernel(name)
    L_end = k.newlabel("end")
    k.e("s_cmp_ge_u32 s2, 256")
    k.e(f"s_cbranch_scc1 {L_end}")
    emit_attn(k)
    k.label(L_end)
    k.e("s_endpgm")
    prof_finish(k, 1)
    return k

if __name__ == "__main__":
    k = gen_attn()
    for x in k.check_hazards(): print(x)
    for x in k.check_waits(): print(x)
    print(k.max_regs(), len(k.lines))
```

```python
from asmlib import *
import math, struct

WS_XN = 0x000000
WS_QF = 0x200000
WS_KV = 0x400000
WS_HF = 0x500000
WS_OF = 0xC00000
WS_FL = 0xE00000
WS_SIZE = 0x1000000

def f32bits(x): return struct.unpack("<I", struct.pack("<f", x))[0]
def hx(x): return "0x%x" % (x & 0xffffffff)
QSCALE = 0.25 * math.log2(math.e)

def srd(k, d, base, size):
    if d != base:
        k.e(f"s_mov_b32 s{d}, s{base}")
        k.e(f"s_mov_b32 s{d+1}, s{base+1}")
    k.e(f"s_mov_b32 s{d+2}, {hx(size)}")
    k.e(f"s_mov_b32 s{d+3}, 0x20000")

def kernel_header(name):
    return f""".globl {name}
.p2align 8
.type {name},@function
{name}:
"""

def kernel_desc(name, vgpr, sgpr, agpr=0):
    accum = (vgpr + 3) // 4 * 4
    nfv = accum + agpr if agpr else vgpr
    return f""".amdhsa_kernel {name}
  .amdhsa_next_free_vgpr {nfv}
  .amdhsa_next_free_sgpr {sgpr}
  .amdhsa_accum_offset {accum}
  .amdhsa_group_segment_fixed_size 0
  .amdhsa_kernarg_size 96
  .amdhsa_user_sgpr_count 2
  .amdhsa_user_sgpr_kernarg_segment_ptr 1
  .amdhsa_system_sgpr_workgroup_id_x 1
.end_amdhsa_kernel
"""

PROF = False
WS_PROF = 0x2000000
def stamp(k, idx):
    if PROF:
        k.e(f"s_memtime s[{64+2*idx}:{65+2*idx}]")
        k.e("s_waitcnt lgkmcnt(0)")
def prof_begin(k):
    if PROF:
        k.e("s_memrealtime s[80:81]")
        k.e("s_memtime s[64:65]")
def prof_finish(k, slot):
    if not PROF: return
    lab = k.newlabel("prof")
    idxs = [i for i, l in enumerate(k.lines) if l.strip() == "s_endpgm"]
    for i in idxs[:-1]: k.lines[i] = f"  s_branch {lab}"
    k.label(lab)
    e = k.e
    e("s_waitcnt vmcnt(0) lgkmcnt(0)")
    e("s_memtime s[78:79]")
    e("s_memrealtime s[82:83]")
    e("s_getreg_b32 s84, hwreg(HW_REG_XCC_ID)")
    e("s_load_dwordx2 s[86:87], s[0:1], 88")
    e("v_lshrrev_b32 v1, 6, v0")
    e("s_lshl_b32 s85, s2, 9")
    e(f"s_add_u32 s85, s85, {hx(WS_PROF + slot * 0x80000)}")
    e("v_lshlrev_b32 v1, 6, v1")
    e("v_add_u32 v1, s85, v1")
    e("s_waitcnt lgkmcnt(0)")
    for i in range(8): e(f"v_mov_b32 v{4+i}, s{64+2*i}")
    e("v_mov_b32 v12, s80"); e("v_mov_b32 v13, s82"); e("v_mov_b32 v14, s84"); e("v_mov_b32 v15, 0")
    e("v_and_b32 v2, 63, v0")
    e("v_cmp_eq_u32 vcc, 0, v2")
    e("s_and_saveexec_b64 s[88:89], vcc")
    e("global_store_dwordx4 v1, v[4:7], s[86:87]")
    e("global_store_dwordx4 v1, v[8:11], s[86:87] offset:16")
    e("global_store_dwordx4 v1, v[12:15], s[86:87] offset:32")
    e("s_endpgm")
```

```python
from common import *

U_BUF = 28928
U_UP = 14464
U_LDS = 2 * U_BUF

class Q:
    def __init__(self): self.q = []
    def push(self, tag): self.q.append(tag)
    def need(self, tags):
        idx = [i for i, t in enumerate(self.q) if t in tags]
        if not idx: return None
        n = len(self.q) - 1 - max(idx)
        self.q = self.q[max(idx) + 1:]
        return n

import os
EXP = os.environ.get("EXP", "")
def emit_up(k, wgreg="s2", store_mod=""):
    e = k.e
    prof_begin(k)
    e("s_load_dwordx4 s[4:7], s[0:1], 48")
    e("s_load_dwordx2 s[12:13], s[0:1], 88")
    e(f"s_and_b32 s14, {wgreg}, 1")
    e("s_lshl_b32 s14, s14, 3")
    e(f"s_bfe_u32 s15, {wgreg}, 0x30003")
    e("s_add_u32 s14, s14, s15")
    e(f"s_bfe_u32 s15, {wgreg}, 0x20001")
    e("s_lshl_b32 s15, s15, 2")
    e(f"s_lshr_b32 s17, {wgreg}, 6")
    e("s_add_u32 s15, s15, s17")
    e("v_lshrrev_b32 v1, 6, v0")
    e("v_and_b32 v2, 63, v0")
    e("v_readfirstlane_b32 s16, v1")
    e("v_lshlrev_b32 v3, 4, v2")
    e("s_movk_i32 s18, 4682")
    e("s_movk_i32 s19, 3360")
    for n in range(7):
        e(f"v_add_u32 v11, {64*n}, v2")
        e(f"v_mul_u32_u24 v12, s18, v11")
        e(f"v_lshrrev_b32 v12, 16, v12")
        e(f"v_lshlrev_b32 v11, 4, v11")
        e(f"v_mad_u32_u24 v{4+n}, v12, s19, v11")
        if n % 4: e(f"v_subrev_u32 v{4+n}, {(n%4)*1024}, v{4+n}")
    e("v_lshrrev_b32 v12, 5, v2")
    e("v_bfe_u32 v13, v2, 2, 2")
    e("v_lshl_add_u32 v12, v12, 3, v13")
    e("v_mul_u32_u24 v11, 224, v12")
    e("v_and_b32 v12, 3, v2")
    e("v_lshl_add_u32 v11, v12, 3, v11")
    e("v_bfe_u32 v12, v2, 4, 1")
    e(f"v_mul_u32_u24 v12, {U_UP}, v12")
    e("v_add_u32 v11, v11, v12")
    e("s_lshr_b32 s18, s16, 1")
    e("s_mul_i32 s20, s18, 114688")
    e("s_mul_i32 s19, s15, 224")
    e("s_add_u32 s20, s20, s19")
    e("s_mul_i32 s21, s18, 7168")
    e("s_and_b32 s18, s16, 1")
    e(f"s_mul_i32 s19, s18, {U_UP}")
    e("s_add_u32 s21, s21, s19")
    e("s_add_u32 s22, s21, 4096")
    e(f"s_add_u32 s23, s21, {U_BUF}")
    e(f"s_add_u32 s33, s21, {U_BUF + 4096}")
    e("s_lshl_b32 s34, s14, 2")
    e("s_add_u32 s34, s34, s16")
    e("s_mul_i32 s35, s34, 114688")
    e("s_lshl_b32 s34, s34, 15")
    if WS_XN: e(f"s_add_u32 s34, s34, {hx(WS_XN)}")
    e("s_cmp_eq_u32 s18, 1")
    e("s_waitcnt lgkmcnt(0)")
    e("s_cselect_b32 s24, s6, s4")
    e("s_cselect_b32 s25, s7, s5")
    e(f"s_mov_b32 s26, {512*3584}")
    e("s_mov_b32 s27, 0x20000")
    srd(k, 28, 12, WS_SIZE)
    ACC = 128; AF = 16; BF = 48
    vm = Q(); lg = Q()
    def dma(buf, tag):
        e(f"s_mov_b32 m0, s{21 if buf == 0 else 23}")
        e("s_nop 0")
        for n in range(4):
            e(f"buffer_load_dwordx4 v{4+n}, s[24:27], s20 offen offset:{n*1024} lds"); vm.push(tag)
        e(f"s_mov_b32 m0, s{22 if buf == 0 else 33}")
        e("s_nop 0")
        for n in range(4, 7):
            e(f"buffer_load_dwordx4 v{4+n}, s[24:27], s20 offen offset:{(n-4)*1024} lds"); vm.push(tag)
        e(f"s_add_u32 s20, s20, {64*3584}")
    def ldB(buf, ks, tag):
        b = BF + 16 * buf + 4 * ks
        e(f"buffer_load_dwordx4 v[{b}:{b+3}], v3, s[28:31], s34 offen offset:{ks*1024}"); vm.push(tag)
        if ks == 3: e("s_add_u32 s34, s34, 4096")
    def rdA(buf, ks, t):
        a = AF + 4 * t
        if "nolds" in EXP and t > 0: return
        for q in range(2):
            e(f"ds_read_b64_tr_b16 v[{a+2*q}:{a+2*q+1}], v11 offset:{buf*U_BUF + (16*ks+4*q)*224 + t*32}")
            lg.push(("A", t))
    for st in range(2):
        if st == 0:
            dma(0, ("D", 0))
            for ks in range(4): ldB(0, ks, ("B", 0, ks))
        else:
            for ks in range(3): ldB(1, ks, ("B", 1, ks))
            dma(1, ("D", 1))
            ldB(1, 3, ("B", 1, 3))
    for r in range(112): e(f"v_mov_b32 v{ACC+r}, 0")
    n = vm.need([("D", 0), ("B", 0, 3)])
    stamp(k, 1)
    e(f"s_waitcnt vmcnt({n})")
    e("s_barrier")
    stamp(k, 2)
    e("s_waitcnt lgkmcnt(0)") if PROF else None
    for t in range(7): rdA(0, 0, t)
    e("s_mov_b32 s36, 4")
    L = k.newlabel("uloop")
    k.label(L)
    snap = None
    for rep in range(2):
        emit = rep == 0
        saved = k.lines
        if not emit: k.lines = []
        for buf in range(2):
            st = 2 * rep + buf
            for ks in range(4):
                b = BF + 16 * buf + 4 * ks
                for t in range(7):
                    n = lg.need([("A", t)])
                    if n is not None: e(f"s_waitcnt lgkmcnt({n})")
                    a = AF + 4 * t
                    e(f"v_mfma_f32_32x32x16_bf16 v[{ACC+16*t}:{ACC+16*t+15}], v[{a}:{a+3}], v[{b}:{b+3}], v[{ACC+16*t}:{ACC+16*t+15}]")
                    if ks < 3: rdA(buf, ks + 1, t)
                    elif t == 3:
                        n = vm.need([("D", st + 1), ("B", st + 1, 3)])
                        lg.q = []
                        e(f"s_waitcnt vmcnt({n}) lgkmcnt(0)")
                        e("s_barrier")
                        for tt in range(4): rdA(1 - buf, 0, tt)
                        if "nodma" in EXP:
                            for _ in range(7): vm.push(("D", st + 2)); e("buffer_load_dwordx4 v4, s[24:27], s26 offen lds")
                        else: dma(buf, ("D", st + 2))
                    elif t > 3: rdA(1 - buf, 0, t)
                ldB(buf, ks, ("B", st + 2, ks))
        if emit:
            body = list(k.lines[len(saved) if False else 0:])
            first = [l for l in k.lines[k.lines.index(L + ":") + 1:]]
        else:
            assert k.lines == first, "loop not in steady state"
            k.lines = saved
    e("s_sub_u32 s36, s36, 1")
    e("s_cmp_lg_u32 s36, 0")
    e(f"s_cbranch_scc1 {L}")
    stamp(k, 3)
    c1 = -2.0 * math.sqrt(2.0 / math.pi) * math.log2(math.e)
    c2 = c1 * 0.044715
    e(f"s_mov_b32 s38, {hx(f32bits(c1))}")
    e("s_mov_b32 s39, s38")
    e(f"s_mov_b32 s40, {hx(f32bits(c2))}")
    e("s_mov_b32 s41, s40")
    e("s_mov_b32 s42, 1.0")
    e("s_mov_b32 s43, 1.0")
    e(f"v_mov_b32 v12, s38")
    e(f"v_mov_b32 v13, s38")
    e("s_mul_i32 s37, s15, 7168")
    e("s_add_u32 s35, s35, s37")
    e(f"s_add_u32 s35, s35, {hx(WS_HF)}")
    e("s_add_u32 s37, s35, 4096")
    e("s_waitcnt vmcnt(0) lgkmcnt(0)")
    T = 16
    for t in range(7):
        A = ACC + 16 * t
        tt = T + 16 * (t % 2)
        for p in range(4):
            a = A + 2 * p
            e(f"v_pk_mul_f32 v[{tt+2*p}:{tt+2*p+1}], v[{a}:{a+1}], v[{a}:{a+1}]")
        for p in range(4):
            e(f"v_pk_fma_f32 v[{tt+2*p}:{tt+2*p+1}], v[{tt+2*p}:{tt+2*p+1}], s[40:41], v[12:13]")
        for p in range(4):
            a = A + 2 * p
            e(f"v_pk_mul_f32 v[{tt+2*p}:{tt+2*p+1}], v[{tt+2*p}:{tt+2*p+1}], v[{a}:{a+1}]")
        for r in range(8): e(f"v_exp_f32 v{tt+r}, v{tt+r}")
        for p in range(4):
            a = A + 2 * p
            e(f"v_pk_mul_f32 v[{a}:{a+1}], v[{a}:{a+1}], v[{a+8}:{a+9}]")
        for p in range(4):
            e(f"v_pk_add_f32 v[{tt+2*p}:{tt+2*p+1}], v[{tt+2*p}:{tt+2*p+1}], s[42:43]")
        for r in range(8): e(f"v_rcp_f32 v{tt+r}, v{tt+r}")
        e("s_nop 0")
        for p in range(4):
            a = A + 2 * p
            e(f"v_pk_mul_f32 v[{a}:{a+1}], v[{a}:{a+1}], v[{tt+2*p}:{tt+2*p+1}]")
        for p in range(4):
            a = A + 2 * p
            e(f"v_cvt_pk_bf16_f32 v{tt+8+p}, v{a}, v{a+1}")
        e(f"buffer_store_dwordx4 v[{tt+8}:{tt+11}], v3, s[28:31], s{35 if t < 4 else 37} offen offset:{(t%4)*1024}{store_mod}")

D_W = 17408
D_LDS = 4 * D_W
D_QS = 1088

def emit_down(k, wgreg="s2", wait_h=None, wait_o=None, load_mod="", first=True, sb=1):
    e = k.e
    if first: prof_begin(k)
    e("s_load_dwordx2 s[4:5], s[0:1], 64")
    e("s_load_dwordx2 s[6:7], s[0:1], 32")
    e("s_load_dwordx2 s[8:9], s[0:1], 0")
    e("s_load_dwordx2 s[10:11], s[0:1], 72")
    e("s_load_dwordx2 s[12:13], s[0:1], 88")
    e(f"s_and_b32 s14, {wgreg}, 7")
    e("s_lshl_b32 s14, s14, 2")
    e(f"s_lshr_b32 s15, {wgreg}, 6")
    e("s_add_u32 s14, s14, s15")
    e(f"s_bfe_u32 s15, {wgreg}, 0x30003")
    e("v_lshrrev_b32 v1, 6, v0")
    e("v_and_b32 v2, 63, v0")
    e("v_readfirstlane_b32 s16, v1")
    e("v_lshlrev_b32 v3, 4, v2")
    e("v_add_u32 v4, 114688, v3")
    e("v_add_u32 v5, 32768, v3")
    e("v_lshrrev_b32 v8, 3, v2")
    e("v_and_b32 v9, 7, v2")
    e("v_lshlrev_b32 v10, 1, v8")
    e("v_and_b32 v10, 4, v10")
    e("v_xor_b32 v10, v10, v9")
    e("v_lshlrev_b32 v10, 4, v10")
    e("v_lshl_add_u32 v6, v8, 10, v10")
    e("v_add_u32 v7, 7168, v6")
    e("v_lshlrev_b32 v14, 4, v9")
    e("v_lshl_add_u32 v14, v8, 10, v14")
    e(f"v_mul_u32_u24 v15, {D_QS}, v9")
    e("v_lshl_add_u32 v15, v8, 4, v15")
    e(f"s_mul_i32 s17, s16, {D_W}")
    e("v_lshrrev_b32 v10, 5, v2")
    e("v_bfe_u32 v11, v2, 2, 2")
    e("v_lshl_add_u32 v10, v10, 2, v11")
    e("v_lshlrev_b32 v10, 7, v10")
    e("v_and_b32 v12, 1, v2")
    e("v_lshl_add_u32 v10, v12, 3, v10")
    e("v_add_u32 v10, s17, v10")
    e("v_bfe_u32 v12, v2, 4, 1")
    e("v_bfe_u32 v13, v2, 1, 1")
    e("v_lshl_add_u32 v12, v12, 1, v13")
    e("v_lshlrev_b32 v11, 1, v11")
    e("v_and_b32 v11, 4, v11")
    e("v_xor_b32 v12, v12, v11")
    e("v_lshl_add_u32 v8, v12, 4, v10")
    e("v_xor_b32 v12, 4, v12")
    e("v_lshl_add_u32 v9, v12, 4, v10")
    e("v_add_u32 v10, s17, v3")
    e(f"s_mul_i32 s18, s16, {28*16*1024}")
    e("s_lshl_b32 s20, s15, 7")
    e("s_add_u32 s18, s18, s20")
    e(f"s_mul_i32 s19, s14, {2*114688}")
    e(f"s_mul_i32 s21, s16, {28*1024}")
    e("s_add_u32 s19, s19, s21")
    e(f"s_add_u32 s19, s19, {hx(WS_HF)}")
    e("s_lshl_b32 s22, s16, 17")
    e("s_add_u32 s22, s22, s20")
    e("s_lshl_b32 s23, s14, 16")
    e("s_lshl_b32 s21, s16, 13")
    e("s_add_u32 s23, s23, s21")
    e(f"s_add_u32 s23, s23, {hx(WS_OF)}")
    e("s_lshl_b32 s44, s14, 16")
    e("s_lshl_b32 s21, s16, 14")
    e("s_add_u32 s44, s44, s21")
    e("s_add_u32 s44, s44, s20")
    e("s_add_u32 s45, s44, 8192")
    e("s_waitcnt lgkmcnt(0)")
    srd(k, 24, 4, 1792 * 1024)
    srd(k, 28, 12, WS_SIZE)
    srd(k, 32, 6, 512 * 1024)
    srd(k, 36, 8, 2048 * 1024)
    srd(k, 40, 10, 2048 * 1024)
    FA = 128; SAc = 192; AF = 16; BF = 32
    vm = Q(); lg = Q()
    R = 7
    def dma(slot, srdw, soff, tag):
        e(f"s_add_u32 m0, s17, {slot*2048}")
        e("s_nop 0")
        e(f"buffer_load_dwordx4 v6, s[{srdw}:{srdw+3}], {soff} offen lds"); vm.push(tag)
        e(f"buffer_load_dwordx4 v7, s[{srdw}:{srdw+3}], {soff} offen offset:1024 lds"); vm.push(tag)
        e(f"s_add_u32 {soff}, {soff}, 16384")
    def ldB(slot, v1, soff, tag):
        b = BF + 8 * slot
        e(f"buffer_load_dwordx4 v[{b}:{b+3}], v3, s[28:31], {soff} offen{load_mod}"); vm.push(tag)
        e(f"buffer_load_dwordx4 v[{b+4}:{b+7}], v{v1}, s[28:31], {soff} offen{load_mod}"); vm.push(tag)
        e(f"s_add_u32 {soff}, {soff}, 1024")
    def rdA(slot, ab):
        for nt in range(2):
            a = AF + 8 * ab + 4 * nt
            for q in range(2):
                e(f"ds_read_b64_tr_b16 v[{a+2*q}:{a+2*q+1}], v{8+nt} offset:{slot*2048 + q*1024}")
                lg.push(("A", ab))
    def mfmas(acc, ab, slot, first=False):
        for tbh in range(2):
            for nt in range(2):
                c = acc + 16 * (nt + 2 * tbh); a = AF + 8 * ab + 4 * nt; b = BF + 8 * slot + 4 * tbh
                cs = "0" if first else f"v[{c}:{c+15}]"
                e(f"v_mfma_f32_32x32x16_bf16 v[{c}:{c+15}], v[{a}:{a+3}], v[{b}:{b+3}], {cs}")
    for s in range(R): dma(s, 24, "s18", ("D", s))
    if wait_h: wait_h(k)
    for s in range(R): ldB(s, 4, "s19", ("B", s))
    for r in range(64): e(f"v_mov_b32 v{FA+r}, 0")
    stamp(k, sb)
    e(f"s_waitcnt vmcnt({vm.need([('D', 0)])})")
    rdA(0, 0)
    e("s_mov_b32 s46, 4")
    L = k.newlabel("dloop")
    k.label(L)
    for s in range(R):
        ab = s % 2
        n_first = 2 * (R - 1 - s) + 4 * s
        n = min(n_first, 2 + 4 * (R - 2))
        e(f"s_waitcnt vmcnt({n}) lgkmcnt(0)")
        nxt = (s + 1) % R
        if s < R - 1:
            rdA(nxt, nxt % 2)
            mfmas(FA, ab, s)
        else:
            mfmas(FA, ab, s)
            rdA(0, 0)
        dma(s, 24, "s18", ("D", s + R))
        ldB(s, 4, "s19", ("B", s + R))
    e("s_sub_u32 s46, s46, 1")
    e("s_cmp_lg_u32 s46, 0")
    e(f"s_cbranch_scc1 {L}")
    stamp(k, sb + 1)
    e("s_waitcnt vmcnt(0) lgkmcnt(0)")
    e("buffer_load_dwordx4 v[96:99], v14, s[36:39], s44 offen")
    e("buffer_load_dwordx4 v[100:103], v14, s[36:39], s45 offen")
    def red_write(acc):
        for t in range(4):
            for qd in range(4):
                r = acc + 16 * t + 4 * qd
                e(f"ds_write_b128 v10, v[{r}:{r+3}] offset:{(4*t+qd)*D_QS}")
    def red_read(dst):
        for p in range(2):
            for src in range(4):
                for h in range(2):
                    r = BF + 32 * p + 8 * src + 4 * h
                    e(f"ds_read_b128 v[{r}:{r+3}], v11 offset:{src*D_W + h*512 + p*128}")
        for p in range(2):
            e(f"s_waitcnt lgkmcnt({8*(1-p)})")
            b = BF + 32 * p
            for j in range(0, 8, 2):
                e(f"v_pk_add_f32 v[{b+j}:{b+j+1}], v[{b+j}:{b+j+1}], v[{b+8+j}:{b+9+j}]")
                e(f"v_pk_add_f32 v[{b+16+j}:{b+17+j}], v[{b+16+j}:{b+17+j}], v[{b+24+j}:{b+25+j}]")
            for j in range(0, 8, 2):
                e(f"v_pk_add_f32 v[{dst+8*p+j}:{dst+8*p+j+1}], v[{b+j}:{b+j+1}], v[{b+16+j}:{b+17+j}]")
    e("s_lshr_b32 s47, s16, 1")
    e(f"s_mul_i32 s47, s47, {8*D_QS}")
    e("s_and_b32 s48, s16, 1")
    e("s_lshl_b32 s48, s48, 8")
    e("s_add_u32 s47, s47, s48")
    e("v_add_u32 v11, s47, v15")
    e("s_nop 4")
    red_write(FA)
    e("s_waitcnt lgkmcnt(0)")
    e("s_barrier")
    G = 104
    red_read(G)
    e("s_barrier")
    vm.q = []
    for s in range(8): dma(s, 32, "s22", ("D", s))
    e(f"s_mov_b32 s48, {hx(f32bits(-math.log2(math.e)))}")
    e("s_mov_b32 s49, s48")
    e("s_mov_b32 s50, 1.0")
    e("s_mov_b32 s51, 1.0")
    for j in range(0, 16, 2): e(f"v_pk_mul_f32 v[{FA+j}:{FA+j+1}], v[{G+j}:{G+j+1}], s[48:49]")
    for j in range(16): e(f"v_exp_f32 v{FA+j}, v{FA+j}")
    e("s_nop 0")
    for j in range(0, 16, 2): e(f"v_pk_add_f32 v[{FA+j}:{FA+j+1}], v[{FA+j}:{FA+j+1}], s[50:51]")
    for j in range(16): e(f"v_rcp_f32 v{FA+j}, v{FA+j}")
    e("s_nop 0")
    for j in range(0, 16, 2): e(f"v_pk_mul_f32 v[{G+j}:{G+j+1}], v[{G+j}:{G+j+1}], v[{FA+j}:{FA+j+1}]")
    stamp(k, sb + 2)
    e("s_waitcnt lgkmcnt(0)") if PROF else None
    if wait_o: wait_o(k)
    for s in range(8): ldB(s, 5, "s23", ("B", s))
    lg.q = []
    e(f"s_waitcnt vmcnt({vm.need([('D', 7)])})")
    rdA(0, 0)
    for s in range(8):
        if s < 7: rdA(s + 1, (s + 1) % 2)
        n = vm.need([("B", s)]); m = lg.need([("A", s % 2)]) if s == 7 else 4
        if s < 7: lg.q = lg.q[-4:]
        e(f"s_waitcnt vmcnt({n}) lgkmcnt({m})")
        mfmas(SAc, s % 2, s, first=(s == 0))
    e("s_nop 11")
    red_write(SAc)
    e("s_waitcnt lgkmcnt(0)")
    e("s_barrier")
    red_read(FA)
    e("s_mov_b32 s48, 0xffff0000")
    for p in range(2):
        for r in range(4):
            x = 96 + 4 * p + r
            e(f"v_lshlrev_b32 v{16+2*r}, 16, v{x}")
            e(f"v_and_b32 v{17+2*r}, s48, v{x}")
        for r in range(4):
            j = 8 * p + 2 * r
            e(f"v_pk_fma_f32 v[{16+2*r}:{17+2*r}], v[{FA+j}:{FA+j+1}], v[{G+j}:{G+j+1}], v[{16+2*r}:{17+2*r}]")
        for r in range(4):
            e(f"v_cvt_pk_bf16_f32 v{24+4*p+r}, v{16+2*r}, v{17+2*r}")
        e(f"buffer_store_dwordx4 v[{24+4*p}:{27+4*p}], v14, s[40:43], s{44+p} offen")
    e("s_endpgm")

def gen_up(name="up_kernel"):
    k = Kernel(name)
    L_end = k.newlabel("end")
    k.e("s_cmp_ge_u32 s2, 256")
    k.e(f"s_cbranch_scc1 {L_end}")
    emit_up(k)
    k.e("s_endpgm")
    k.label(L_end)
    k.e("s_endpgm")
    prof_finish(k, 2)
    return k

def gen_down(name="down_kernel"):
    k = Kernel(name)
    L_end = k.newlabel("end")
    k.e("s_cmp_ge_u32 s2, 256")
    k.e(f"s_cbranch_scc1 {L_end}")
    emit_down(k)
    k.label(L_end)
    k.e("s_endpgm")
    prof_finish(k, 3)
    return k

if __name__ == "__main__":
    assert all((c * 4682) >> 16 == c // 14 for c in range(448))
    for k in (gen_up(), gen_down()):
        for x in k.check_hazards(): print(x)
        for x in k.check_waits(): print(x)
        print(k.name, k.max_regs(), len(k.lines))
```

```python
from common import *

K1_WQ = 0
K1_XN = 65536
K1_WKV = 65536 + 2 * 33792
K1_LDS = K1_WKV + 16384

def gen_k1(name="ln_qkv_kernel"):
    k = Kernel(name)
    e = k.e
    L_end = k.newlabel("end")
    e("s_cmp_ge_u32 s2, 256")
    e(f"s_cbranch_scc1 {L_end}")
    prof_begin(k)
    e("s_load_dwordx4 s[4:7], s[0:1], 0")
    e("s_load_dwordx4 s[8:11], s[0:1], 16")
    e("s_load_dwordx2 s[12:13], s[0:1], 88")
    e("s_and_b32 s14, s2, 7")
    e("s_lshl_b32 s14, s14, 2")
    e("s_lshr_b32 s15, s2, 6")
    e("s_add_u32 s14, s14, s15")
    e("s_lshr_b32 s15, s2, 3")
    e("s_and_b32 s15, s15, 7")
    e("v_lshrrev_b32 v1, 6, v0")
    e("v_and_b32 v2, 63, v0")
    e("v_readfirstlane_b32 s16, v1")
    e("v_lshrrev_b32 v3, 3, v2")
    e("v_and_b32 v4, 7, v2")
    e("v_lshlrev_b32 v5, 10, v3")
    e("v_lshl_add_u32 v6, v4, 4, v5")
    e("v_lshlrev_b32 v7, 1, v3")
    e("v_and_b32 v7, 4, v7")
    e("v_xor_b32 v7, v7, v4")
    e("v_lshl_add_u32 v7, v7, 4, v5")
    e("v_lshlrev_b32 v8, 4, v2")
    e("s_lshl_b32 s17, s14, 16")
    e("s_lshl_b32 s18, s16, 13")
    e("s_add_u32 s17, s17, s18")
    e("s_waitcnt lgkmcnt(0)")
    srd(k, 20, 4, 2048 * 1024)
    srd(k, 24, 6, 512 * 1024)
    X = 16
    for m in range(8):
        e(f"buffer_load_dwordx4 v[{X+4*m}:{X+4*m+3}], v6, s[20:23], s17 offen offset:{m*128}")
    e("s_lshl_b32 s18, s16, 16")
    e("s_lshl_b32 s19, s15, 7")
    e("s_add_u32 s18, s18, s19")
    e("s_lshl_b32 s19, s16, 13")
    for n in range(8):
        e(f"s_mov_b32 m0, s19")
        e(f"s_add_u32 s19, s19, 1024")
        e(f"buffer_load_dwordx4 v7, s[24:27], s18 offen lds")
        if n < 7: e(f"s_add_u32 s18, s18, 8192")
    L_nokv = k.newlabel("nokv")
    e("s_cmp_ge_u32 s15, 4")
    e(f"s_cbranch_scc1 {L_nokv}")
    e("s_cmp_ge_u32 s15, 2")
    e("s_cselect_b32 s28, s10, s8")
    e("s_cselect_b32 s29, s11, s9")
    e("s_mov_b32 s30, 16384")
    e("s_mov_b32 s31, 0x20000")
    e("s_lshl_b32 s18, s16, 11")
    e(f"s_add_u32 s19, s18, {K1_WKV}")
    e("s_mov_b32 m0, s19")
    e("s_nop 0")
    e("buffer_load_dwordx4 v8, s[28:31], s18 offen lds")
    e("buffer_load_dwordx4 v8, s[28:31], s18 offen offset:1024 lds")
    k.label(L_nokv)
    srd(k, 32, 12, WS_SIZE)
    e("s_lshr_b32 s18, s16, 2")
    e("s_mul_i32 s18, s18, 33792")
    e("s_and_b32 s19, s16, 3")
    e("s_lshl_b32 s19, s19, 7")
    e("s_add_u32 s18, s18, s19")
    e(f"s_add_u32 s18, s18, {K1_XN}")
    e("v_mul_u32_u24 v9, 528, v4")
    e("v_lshl_add_u32 v9, v3, 4, v9")
    e("v_add_u32 v9, s18, v9")
    e("s_mov_b32 s36, 0xffff0000")
    F = 48
    stamp(k, 1)
    for m in range(8):
        e(f"s_waitcnt vmcnt({8 + 7 - m})")
        if m == 0 or m == 7: stamp(k, 2 if m == 0 else 3)
        for q in range(4):
            r = X + 4 * m + q
            e(f"v_lshlrev_b32 v{F+8*m+2*q}, 16, v{r}")
            e(f"v_and_b32 v{F+8*m+2*q+1}, s36, v{r}")
    A = 112
    for a in range(4):
        e(f"v_pk_add_f32 v[{A+2*a}:{A+2*a+1}], v[{F+2*a}:{F+2*a+1}], v[{F+8+2*a}:{F+8+2*a+1}]")
    for m in range(2, 8):
        for a in range(4):
            e(f"v_pk_add_f32 v[{A+2*a}:{A+2*a+1}], v[{A+2*a}:{A+2*a+1}], v[{F+8*m+2*a}:{F+8*m+2*a+1}]")
    def reduce8(A, T):
        e(f"v_pk_add_f32 v[{A}:{A+1}], v[{A}:{A+1}], v[{A+2}:{A+3}]")
        e(f"v_pk_add_f32 v[{A+4}:{A+5}], v[{A+4}:{A+5}], v[{A+6}:{A+7}]")
        e(f"v_pk_add_f32 v[{A}:{A+1}], v[{A}:{A+1}], v[{A+4}:{A+5}]")
        e(f"v_add_f32 v{A}, v{A}, v{A+1}")
        e("s_nop 1")
        e(f"v_add_f32_dpp v{A}, v{A}, v{A} quad_perm:[1,0,3,2] row_mask:0xf bank_mask:0xf")
        e("s_nop 1")
        e(f"v_add_f32_dpp v{A}, v{A}, v{A} quad_perm:[2,3,0,1] row_mask:0xf bank_mask:0xf")
        e("s_nop 1")
        e(f"v_add_f32_dpp v{A}, v{A}, v{A} row_half_mirror row_mask:0xf bank_mask:0xf")
    reduce8(A, 0)
    e(f"v_mul_f32 v120, {hx(f32bits(-1.0/512))}, v{A}")
    e(f"v_mov_b32 v121, v120")
    for m in range(8):
        for a in range(4):
            T = X + 2 * ((4 * m + a) % 16)
            e(f"v_pk_add_f32 v[{T}:{T+1}], v[{F+8*m+2*a}:{F+8*m+2*a+1}], v[120:121]")
        for a in range(4):
            T = X + 2 * ((4 * m + a) % 16)
            if m == 0: e(f"v_pk_mul_f32 v[{A+2*a}:{A+2*a+1}], v[{T}:{T+1}], v[{T}:{T+1}]")
            else: e(f"v_pk_fma_f32 v[{A+2*a}:{A+2*a+1}], v[{T}:{T+1}], v[{T}:{T+1}], v[{A+2*a}:{A+2*a+1}]")
    reduce8(A, 0)
    e(f"v_mul_f32 v{A}, {hx(f32bits(1.0/512))}, v{A}")
    e(f"v_cvt_pk_bf16_f32 v{A}, v{A}, v120")
    e(f"v_and_b32 v121, s36, v{A}")
    e(f"v_lshlrev_b32 v{A}, 16, v{A}")
    e(f"v_add_f32 v{A}, {hx(f32bits(1e-5))}, v{A}")
    e(f"v_cvt_pk_bf16_f32 v{A}, v{A}, v{A}")
    e(f"v_lshlrev_b32 v{A}, 16, v{A}")
    e(f"v_sqrt_f32 v{A}, v{A}")
    e("s_nop 0")
    e(f"v_cvt_pk_bf16_f32 v{A}, v{A}, v{A}")
    e(f"v_lshlrev_b32 v{A}, 16, v{A}")
    e(f"v_rcp_f32 v122, v{A}")
    e("s_nop 0")
    e("v_mov_b32 v123, v122")
    e("v_mul_f32 v120, v121, v122")
    e("v_mov_b32 v121, v120")
    for m in range(8):
        for a in range(4):
            p = F + 8 * m + 2 * a
            e(f"v_pk_fma_f32 v[{p}:{p+1}], v[{p}:{p+1}], v[122:123], v[120:121]")
        for a in range(4):
            p = F + 8 * m + 2 * a
            e(f"v_cvt_pk_bf16_f32 v{X+4*m+a}, v{p}, v{p+1}")
        e(f"ds_write_b128 v9, v[{X+4*m}:{X+4*m+3}] offset:{m*4224}")
    e("v_and_b32 v10, 31, v2")
    e("v_lshrrev_b32 v11, 5, v2")
    e("v_mul_u32_u24 v12, 528, v11")
    e("v_lshl_add_u32 v12, v10, 4, v12")
    e("v_bfe_u32 v13, v2, 2, 2")
    e("v_and_b32 v14, 3, v2")
    e("v_lshl_add_u32 v15, v11, 3, v13")
    stamp(k, 4)
    e("s_waitcnt vmcnt(0) lgkmcnt(0)")
    stamp(k, 5)
    e("s_barrier")
    stamp(k, 6)
    L_kv = k.newlabel("kv"); L_cp = k.newlabel("cp")
    e("s_cmp_ge_u32 s16, 6")
    e(f"s_cbranch_scc1 {L_cp}")
    e("s_cmp_ge_u32 s16, 4")
    e(f"s_cbranch_scc1 {L_kv}")
    e("s_and_b32 s18, s16, 1")
    e("s_mul_i32 s19, s18, 33792")
    e(f"s_add_u32 s19, s19, {K1_XN}")
    e("v_add_u32 v12, s19, v12")
    e("s_lshr_b32 s19, s16, 1")
    e("s_lshl_b32 s37, s19, 2")
    e("v_bfe_u32 v1, v2, 4, 1")
    e("v_lshlrev_b32 v1, 1, v1")
    e("v_lshrrev_b32 v3, 1, v14")
    e("v_add3_u32 v1, v1, v3, s37")
    e("v_lshlrev_b32 v3, 1, v13")
    e("v_and_b32 v3, 4, v3")
    e("v_xor_b32 v1, v1, v3")
    e("v_lshlrev_b32 v1, 4, v1")
    e("v_lshl_add_u32 v1, v15, 7, v1")
    e("v_and_b32 v3, 1, v14")
    e("v_lshl_add_u32 v1, v3, 3, v1")
    ACC = 48; AF = 64; BF = 96; D = 6
    def chain(a_addr, a_s, a_q, swap):
        def rd(s):
            a = AF + 4 * (s % 8); b = BF + 4 * (s % 8)
            e(f"ds_read_b64_tr_b16 v[{a}:{a+1}], v{a_addr} offset:{s*a_s}")
            e(f"ds_read_b64_tr_b16 v[{a+2}:{a+3}], v{a_addr} offset:{s*a_s+a_q}")
            e(f"ds_read_b128 v[{b}:{b+3}], v12 offset:{s*1056}")
        DD = 5
        for s in range(DD): rd(s)
        for s in range(32):
            rem = min(31, s + DD - 1) - s
            e(f"s_waitcnt lgkmcnt({3*rem})")
            a = AF + 4 * (s % 8); b = BF + 4 * (s % 8)
            x, y = (b, a) if swap else (a, b)
            c = "0" if s == 0 else f"v[{ACC}:{ACC+15}]"
            e(f"v_mfma_f32_32x32x16_bf16 v[{ACC}:{ACC+15}], v[{x}:{x+3}], v[{y}:{y+3}], {c}")
            if s + DD < 32: rd(s + DD)
    chain(1, 2048, 512, False)
    e("s_lshl_b32 s37, s14, 1")
    e("s_add_u32 s37, s37, s18")
    e("s_lshl_b32 s37, s37, 15")
    e("s_lshl_b32 s38, s15, 12")
    e("s_add_u32 s37, s37, s38")
    e("s_lshl_b32 s38, s19, 11")
    e("s_add_u32 s37, s37, s38")
    e(f"s_add_u32 s37, s37, {hx(WS_QF)}")
    e(f"s_mov_b32 s38, {hx(f32bits(QSCALE))}")
    e(f"s_mov_b32 s39, s38")
    e("s_nop 3")
    for r in range(0, 16, 2):
        e(f"v_pk_mul_f32 v[{ACC+r}:{ACC+r+1}], v[{ACC+r}:{ACC+r+1}], s[38:39]")
    for r in range(8):
        e(f"v_cvt_pk_bf16_f32 v{16+r}, v{ACC+2*r}, v{ACC+2*r+1}")
    e("buffer_store_dwordx4 v[16:19], v8, s[32:35], s37 offen")
    e("buffer_store_dwordx4 v[20:23], v8, s[32:35], s37 offen offset:1024")
    e("s_endpgm")
    k.label(L_kv)
    e("s_cmp_lg_u32 s16, 4")
    e(f"s_cbranch_scc1 {L_end}")
    e("s_cmp_ge_u32 s15, 4")
    e(f"s_cbranch_scc1 {L_end}")
    e("s_and_b32 s18, s15, 1")
    e("s_mul_i32 s19, s18, 33792")
    e(f"s_add_u32 s19, s19, {K1_XN}")
    e("v_add_u32 v12, s19, v12")
    e("v_lshlrev_b32 v1, 5, v15")
    e("v_lshl_add_u32 v1, v14, 3, v1")
    e(f"v_add_u32 v1, {K1_WKV}, v1")
    e("s_lshl_b32 s37, s14, 1")
    e("s_add_u32 s37, s37, s18")
    e("s_lshr_b32 s38, s37, 3")
    e("s_lshl_b32 s38, s38, 14")
    e("s_and_b32 s37, s37, 7")
    e("s_lshl_b32 s37, s37, 10")
    e("s_add_u32 s37, s37, s38")
    e(f"s_add_u32 s37, s37, {hx(WS_KV)}")
    L_v = k.newlabel("v")
    e("s_cmp_ge_u32 s15, 2")
    e(f"s_cbranch_scc1 {L_v}")
    chain(1, 512, 128, False)
    e("v_and_b32 v3, 0x33, v2")
    e("v_bfe_u32 v4, v2, 2, 1")
    e("v_lshl_or_b32 v3, v4, 3, v3")
    e("v_bfe_u32 v4, v2, 3, 1")
    e("v_lshl_or_b32 v3, v4, 2, v3")
    e("v_lshlrev_b32 v3, 4, v3")
    e("s_nop 5")
    for r in range(4):
        e(f"v_cvt_pk_bf16_f32 v{16+r}, v{ACC+2*r}, v{ACC+2*r+1}")
    e("buffer_store_dwordx4 v[16:19], v3, s[32:35], s37 offen")
    e("s_endpgm")
    k.label(L_v)
    chain(1, 512, 128, True)
    e("v_and_b32 v3, 15, v2")
    e("v_lshlrev_b32 v3, 4, v3")
    e("v_lshl_add_u32 v3, v11, 8, v3")
    e("v_bfe_u32 v4, v2, 4, 1")
    e("v_lshl_add_u32 v3, v4, 9, v3")
    e("v_cmp_eq_u32 vcc, 1, v4")
    e("s_add_u32 s37, s37, 8192")
    e("s_nop 4")
    for r in range(8):
        e(f"v_cvt_pk_bf16_f32 v{16+r}, v{ACC+2*r}, v{ACC+2*r+1}")
    for r in range(4):
        e(f"v_cndmask_b32 v{16+r}, v{16+r}, v{20+r}, vcc")
    e("buffer_store_dwordx4 v[16:19], v3, s[32:35], s37 offen")
    e("s_endpgm")
    k.label(L_cp)
    e("s_sub_u32 s18, s16, 6")
    e("s_mul_i32 s19, s18, 33792")
    e("s_mul_i32 s37, s15, 4224")
    e("s_add_u32 s19, s19, s37")
    e(f"s_add_u32 s19, s19, {K1_XN}")
    e("v_add_u32 v12, s19, v12")
    for q in range(4):
        e(f"ds_read_b128 v[{16+4*q}:{19+4*q}], v12 offset:{q*1056}")
    e("s_lshl_b32 s37, s14, 1")
    e("s_add_u32 s37, s37, s18")
    e("s_lshl_b32 s37, s37, 15")
    e("s_lshl_b32 s38, s15, 12")
    e("s_add_u32 s37, s37, s38")
    if WS_XN: e(f"s_add_u32 s37, s37, {hx(WS_XN)}")
    for q in range(4):
        e(f"s_waitcnt lgkmcnt({3-q})")
        e(f"buffer_store_dwordx4 v[{16+4*q}:{19+4*q}], v8, s[32:35], s37 offen offset:{q*1024}")
    e("s_endpgm")
    k.label(L_end)
    e("s_endpgm")
    prof_finish(k, 0)
    return k

if __name__ == "__main__":
    k = gen_k1()
    for x in k.check_hazards(): print(x)
    for x in k.check_waits(): print(x)
    print(k.max_regs(), len(k.lines))
```

```python
import sys, re, os
import common
common.PROF = bool(os.environ.get("PROF"))
from common import *
import k1, attn, ffn

REF = open("recurrent_scan__grouped_kv_mqa__geglu_ffn__prompt.s.ref").read()
HEAD = "".join(l + "\n" for l in REF.split("\n") if l.startswith(";") and "@launch" not in l and "Override launch" not in l and "grid=ceil" not in l)

def assemble(launches, kernels, path):
    out = HEAD
    for n, g, b, l in launches:
        out += f"; @launch kernel={n} grid=({g},1,1) block=({b},1,1) lds={l}\n"
    out += '.amdgcn_target "amdgcn-amd-amdhsa--gfx950"\n.text\n'
    bad = False
    for k in kernels:
        for x in k.check_hazards()[:8]: print(k.name, x); bad = True
        for x in k.check_waits()[:8]: print(k.name, x); bad = True
        out += kernel_header(k.name) + k.text()
    out += '.section .rodata,"a"\n'
    for k in kernels:
        v, s, a = k.max_regs()
        v = max(v, getattr(k, "min_vgpr", 0))
        out += ".p2align 6\n" + kernel_desc(k.name, v, max(s, 16), a)
    open(path, "w").write(out)
    if bad: print("!!! static check problems")

def v1(path):
    ks = [k1.gen_k1(), attn.gen_attn(), ffn.gen_up(), ffn.gen_down()]
    assemble([("ln_qkv_kernel", 256, 512, k1.K1_LDS), ("attn_kernel", 256, 256, attn.A_LDS),
              ("up_kernel", 256, 256, ffn.U_LDS), ("down_kernel", 256, 256, ffn.D_LDS)], ks, path)

def uponly(path):
    ks = [k1.gen_k1(), ffn.gen_up()]
    assemble([("ln_qkv_kernel", 256, 512, k1.K1_LDS), ("up_kernel", 256, 256, ffn.U_LDS)], ks, path)

def gen_k2a(name="attn_up_kernel", a_first=True, gprio=3, aprio=0):
    k = Kernel(name)
    L_end = k.newlabel("end"); L_b = k.newlabel("roleb")
    k.e("s_cmp_ge_u32 s2, 512")
    k.e(f"s_cbranch_scc1 {L_end}")
    k.e("s_and_b32 s3, s2, 255")
    k.e("s_cmp_ge_u32 s2, 256")
    k.e(f"s_cbranch_scc1 {L_b}")
    def A():
        if aprio: k.e(f"s_setprio {aprio}")
        attn.emit_attn(k, "s3")
    def G():
        if gprio: k.e(f"s_setprio {gprio}")
        ffn.emit_up(k, "s3")
        k.e("s_endpgm")
    (A if a_first else G)()
    k.label(L_b)
    (G if a_first else A)()
    k.label(L_end)
    k.e("s_endpgm")
    prof_finish(k, 1)
    k.min_vgpr = 256
    return k

def v2(path):
    af = os.environ.get("AFIRST", "1") == "1"
    ks = [k1.gen_k1(), gen_k2a(a_first=af, gprio=int(os.environ.get("GPRIO", "3")), aprio=int(os.environ.get("APRIO", "0"))), ffn.gen_down()]
    assemble([("ln_qkv_kernel", 256, 512, k1.K1_LDS), ("attn_up_kernel", 512, 256, max(attn.A_LDS, ffn.U_LDS)),
              ("down_kernel", 256, 256, ffn.D_LDS)], ks, path)

if __name__ == "__main__":
    which = sys.argv[1] if len(sys.argv) > 1 else "v1"
    path = sys.argv[2] if len(sys.argv) > 2 else "recurrent_scan__grouped_kv_mqa__geglu_ffn__prompt.s"
    globals()[which](path)
```

```python
from common import *

A_RING = 0
A_ONES = 65536
A_LDS = 65536 + 8192

A_LDS2 = 81920

def emit_attn(k, wgreg="s2", publish=None, store_mod="", qproj=False, prio_main=None, touch=False):
    e = k.e
    prof_begin(k)
    e("s_load_dwordx2 s[12:13], s[0:1], 88")
    if qproj: e("s_load_dwordx2 s[4:5], s[0:1], 8")
    if touch:
        e("s_load_dwordx2 s[8:9], s[0:1], 64")
        e("s_load_dwordx2 s[10:11], s[0:1], 32")
    e(f"s_and_b32 s14, {wgreg}, 7")
    e("s_lshl_b32 s14, s14, 2")
    e(f"s_lshr_b32 s15, {wgreg}, 6")
    e("s_add_u32 s14, s14, s15")
    e(f"s_lshr_b32 s15, {wgreg}, 3")
    e("s_and_b32 s15, s15, 7")
    e("v_lshrrev_b32 v1, 6, v0")
    e("v_and_b32 v2, 63, v0")
    e("v_readfirstlane_b32 s16, v1")
    e("v_lshlrev_b32 v12, 4, v2")
    e("v_mov_b32 v3, 0xdddd")
    e("s_lshl_b32 s17, s14, 16")
    e("s_lshl_b32 s18, s15, 12")
    e("s_add_u32 s17, s17, s18")
    e("s_lshl_b32 s18, s16, 10")
    e("s_add_u32 s17, s17, s18")
    e("s_lshl_b32 s19, s16, 12")
    if qproj:
        e("v_lshrrev_b32 v8, 3, v2")
        e("v_and_b32 v9, 7, v2")
        e("v_lshlrev_b32 v10, 1, v8")
        e("v_and_b32 v10, 4, v10")
        e("v_xor_b32 v10, v10, v9")
        e("v_lshlrev_b32 v10, 4, v10")
        e("v_lshl_add_u32 v120, v8, 10, v10")
        for n in range(1, 4): e(f"v_add_u32 v{120+n}, {n*7168}, v120")
        e("v_add_u32 v124, 32768, v12")
        e("s_lshl_b32 s36, s16, 17")
        e("s_lshl_b32 s37, s15, 7")
        e("s_add_u32 s36, s36, s37")
        e("s_lshl_b32 s37, s16, 14")
        e("s_add_u32 s37, s37, 16384")
        e("s_lshl_b32 s38, s14, 16")
        e("s_lshl_b32 s39, s16, 13")
        e("s_add_u32 s38, s38, s39")
        if WS_XN: e(f"s_add_u32 s38, s38, {hx(WS_XN)}")
        e("s_add_u32 s39, s38, 4096")
    e("s_waitcnt lgkmcnt(0)")
    srd(k, 20, 12, WS_SIZE)
    e(f"s_add_u32 s24, s12, {hx(WS_KV)}")
    e("s_addc_u32 s25, s13, 0")
    e("s_mov_b32 s26, 0x20000")
    e("s_mov_b32 s27, 0x20000")
    def dma(soff, m0v):
        e(f"s_mov_b32 m0, {m0v}")
        e("s_nop 0")
        for q in range(4):
            e(f"buffer_load_dwordx4 v12, s[24:27], {soff} offen offset:{q*1024} lds")
    def ones():
        e("v_and_b32 v13, 11, v2")
        e("v_cmp_eq_u32 vcc, 0, v13")
        e("v_mov_b32 v13, 0x3f803f80")
        e("s_lshl_b32 s18, s16, 11")
        e(f"s_add_u32 s18, s18, {A_ONES}")
        for r in range(4): e(f"v_cndmask_b32 v{16+r}, 0, v13, vcc")
        e("v_add_u32 v13, s18, v12")
        e("ds_write_b128 v13, v[16:19]")
        e("ds_write_b128 v13, v[16:19] offset:1024")
    if not qproj:
        dma("s19", "s19")
        e(f"s_add_u32 s28, s17, {hx(WS_QF)}")
        e(f"s_add_u32 s29, s28, 32768")
        e("buffer_load_dwordx4 v[4:7], v12, s[20:23], s28 offen")
        e("buffer_load_dwordx4 v[8:11], v12, s[20:23], s29 offen")
    else:
        srd(k, 4, 4, 512 * 1024)
        XB = 128; ACC = 192; AF = 80
        e("s_mov_b32 s40, s37")
        for g in range(4):
            e("s_mov_b32 m0, s40")
            e("s_add_u32 s40, s40, 4096")
            for n in range(4):
                e(f"buffer_load_dwordx4 v{120+n}, s[4:7], s36 offen offset:{n*1024} lds")
            e("s_add_u32 s36, s36, 32768")
            for ks in (2 * g, 2 * g + 1):
                so = "s38" if ks < 4 else "s39"
                e(f"buffer_load_dwordx4 v[{XB+8*ks}:{XB+8*ks+3}], v12, s[20:23], {so} offen offset:{(ks%4)*1024}")
                e(f"buffer_load_dwordx4 v[{XB+8*ks+4}:{XB+8*ks+7}], v124, s[20:23], {so} offen offset:{(ks%4)*1024}")
        dma("s19", "s19")
        e("v_lshrrev_b32 v8, 5, v2")
        e("v_bfe_u32 v9, v2, 2, 2")
        e("v_lshl_add_u32 v8, v8, 3, v9")
        e("v_lshlrev_b32 v8, 7, v8")
        e("v_and_b32 v10, 1, v2")
        e("v_lshl_add_u32 v8, v10, 3, v8")
        e("v_add_u32 v8, s37, v8")
        e("v_bfe_u32 v10, v2, 4, 1")
        e("v_bfe_u32 v11, v2, 1, 1")
        e("v_lshl_add_u32 v10, v10, 1, v11")
        e("v_lshlrev_b32 v9, 1, v9")
        e("v_and_b32 v9, 4, v9")
        e("v_xor_b32 v10, v10, v9")
        e("v_lshl_add_u32 v125, v10, 4, v8")
        e("v_xor_b32 v10, 4, v10")
        e("v_lshl_add_u32 v126, v10, 4, v8")
        e("v_add_u32 v127, s37, v12")
        e("s_lshl_b32 s40, s16, 11")
        e("s_add_u32 s40, s40, 16384")
        e("v_add_u32 v119, s40, v12")
        def rdA(ks):
            for nt in range(2):
                a = AF + 8 * (ks % 4) + 4 * nt
                for q in range(2):
                    e(f"ds_read_b64_tr_b16 v[{a+2*q}:{a+2*q+1}], v{125+nt} offset:{ks*2048 + q*512}")
        stamp(k, 4)
        for g in range(4):
            e(f"s_waitcnt vmcnt({8*(3-g) + 4})")
            rdA(2 * g); rdA(2 * g + 1)
            if g > 0:
                pass
            for ks in (2 * g, 2 * g + 1):
                e(f"s_waitcnt lgkmcnt({4 if ks % 2 == 0 else 0})")
                for tbh in range(2):
                    for nt in range(2):
                        c = ACC + 16 * (nt + 2 * tbh); a = AF + 8 * (ks % 4) + 4 * nt; b = XB + 8 * ks + 4 * tbh
                        cs = "0" if ks == 0 else f"v[{c}:{c+15}]"
                        e(f"v_mfma_f32_32x32x16_bf16 v[{c}:{c+15}], v[{a}:{a+3}], v[{b}:{b+3}], {cs}")
        e(f"s_mov_b32 s40, {hx(f32bits(QSCALE))}")
        e("s_mov_b32 s41, s40")
        e("s_nop 6")
        for t in range(4):
            for qd in range(4):
                r = ACC + 16 * t + 4 * qd
                e(f"ds_write_b128 v127, v[{r}:{r+3}] offset:{(4*t+qd)*1024}")
        e("s_waitcnt lgkmcnt(0)")
        e("s_barrier")
        for tbh in range(2):
            for src in range(4):
                for qq in range(2):
                    r = XB + 32 * tbh + 8 * src + 4 * qq
                    e(f"ds_read_b128 v[{r}:{r+3}], v119 offset:{src*16384 + tbh*8192 + qq*1024}")
        for tbh in range(2):
            e(f"s_waitcnt lgkmcnt({8*(1-tbh)})")
            if tbh == 1: e("s_barrier")
            b = XB + 32 * tbh
            for j in range(0, 8, 2):
                e(f"v_pk_add_f32 v[{b+j}:{b+j+1}], v[{b+j}:{b+j+1}], v[{b+8+j}:{b+9+j}]")
                e(f"v_pk_add_f32 v[{b+16+j}:{b+17+j}], v[{b+16+j}:{b+17+j}], v[{b+24+j}:{b+25+j}]")
            for j in range(0, 8, 2):
                e(f"v_pk_add_f32 v[{b+j}:{b+j+1}], v[{b+j}:{b+j+1}], v[{b+16+j}:{b+17+j}]")
            for j in range(0, 8, 2):
                e(f"v_pk_mul_f32 v[{b+j}:{b+j+1}], v[{b+j}:{b+j+1}], s[40:41]")
            for j in range(4):
                e(f"v_cvt_pk_bf16_f32 v{4+4*tbh+j}, v{b+2*j}, v{b+2*j+1}")
        stamp(k, 5)
    e("s_add_u32 s30, s19, 16384")
    dma("s30", "s30")
    e("s_add_u32 s30, s30, 16384")
    dma("s30", "s30")
    e("s_add_u32 s30, s30, 16384")
    ones()
    e("v_and_b32 v13, 15, v2")
    e("v_lshlrev_b32 v13, 4, v13")
    e("v_lshrrev_b32 v14, 5, v2")
    e("v_lshl_add_u32 v13, v14, 8, v13")
    e("v_bfe_u32 v14, v2, 4, 1")
    e(f"v_mov_b32 v15, {A_ONES - 8192}")
    e("v_mad_u32_u24 v13, v14, v15, v13")
    e("v_xor_b32 v14, 1, v14")
    SA, SB, O0, O1 = 16, 32, 48, 64
    KF = [80, 84]; VF = [88, 96]
    vKc, vKn, vVc, vVn = 104, 105, 106, 107
    e(f"v_mov_b32 v{vKc}, v12")
    e(f"v_add_u32 v{vKn}, 16384, v12")
    e(f"v_mov_b32 v{vVc}, v13")
    e("s_mov_b32 s31, 16384")
    e(f"v_mad_u32_u24 v{vVn}, v14, s31, v13")
    for r in range(16):
        e(f"v_mov_b32 v{O0+r}, 0")
        e(f"v_mov_b32 v{O1+r}, 0")
    if touch:
        e("s_mov_b32 s49, 57344")
        e(f"s_lshr_b32 s42, {wgreg}, 3")
        e("s_mul_i32 s48, s16, 24576")
        e("s_cmp_eq_u32 s16, 3")
        e("s_cselect_b32 s44, s10, s8")
        e("s_cselect_b32 s45, s11, s9")
        e("s_cselect_b32 s43, 16384, s49")
        e("s_cselect_b32 s48, 0, s48")
        e("s_mul_i32 s42, s42, s43")
        e("s_add_u32 s46, s42, s43")
        e("s_add_u32 s42, s42, s48")
        e("s_add_u32 s43, s42, 24576")
        e("s_min_u32 s46, s46, s43")
        e("s_mov_b32 s47, 0x20000")
        e("v_lshlrev_b32 v108, 7, v2")
    S = [SA, SB]; O = [O0, O1]; Q = [4, 8]
    def rdK(t):
        a = vKc if t < 8 else vKn
        e(f"ds_read_b128 v[{KF[t%2]}:{KF[t%2]+3}], v{a} offset:{(t%8)*1024}")
    def rdV(t):
        a = vVc if t < 8 else vVn
        for c in range(2):
            e(f"ds_read_b128 v[{VF[t%2]+4*c}:{VF[t%2]+4*c+3}], v{a} offset:{8192+(t%8)*1024+c*512}")
    def ex(b, lo, hi):
        for r in range(lo, hi): e(f"v_exp_f32 v{b+r}, v{b+r}")
    def qk(X, t, q):
        e(f"v_mfma_f32_32x32x16_bf16 v[{X}:{X+15}], v[{KF[t%2]}:{KF[t%2]+3}], v[{Q[q]}:{Q[q]+3}], 0")
    stamp(k, 1)
    e("s_waitcnt vmcnt(8) lgkmcnt(0)")
    e("s_barrier")
    stamp(k, 2)
    e("s_waitcnt lgkmcnt(0)") if PROF else None
    rdK(0); rdK(1); rdV(0)
    e("s_waitcnt lgkmcnt(3)")
    qk(SA, 0, 0)
    qk(SB, 0, 1)
    e("s_nop 10")
    ex(SA, 0, 5)
    e("s_mov_b32 s33, 8")
    if prio_main is not None: e(f"s_setprio {prio_main}")
    L_loop = k.newlabel("aloop")
    k.label(L_loop)
    for t in range(8):
        for q in range(2):
            X, Y = S[q], S[1 - q]
            V0, V1 = VF[t % 2], VF[t % 2] + 4
            ex(X, 5, 7)
            if q == 0:
                e("s_waitcnt lgkmcnt(0)")
                rdV(t + 1)
            else:
                rdK(t + 2)
            ex(X, 7, 10)
            e(f"v_smfmac_f32_32x32x32_bf16 v[{O[q]}:{O[q]+15}], v[{V0}:{V0+3}], v[{X}:{X+7}], v3")
            ex(X, 10, 13)
            if t == 5 and q == 0:
                e("s_waitcnt vmcnt(4)")
                e("s_barrier")
                e("s_and_b32 s34, s30, 0xffff")
                dma("s30", "s34")
                e("s_add_u32 s30, s30, 16384")
                if touch:
                    e("buffer_load_dword v109, v108, s[44:47], s42 offen ; touch")
                    e("s_add_u32 s42, s42, 8192")
            ex(X, 13, 16)
            ex(Y, 0, 2)
            e(f"v_smfmac_f32_32x32x32_bf16 v[{O[q]}:{O[q]+15}], v[{V1}:{V1+3}], v[{X+8}:{X+15}], v3")
            ex(Y, 2, 5)
            qk(X, t + 1, q)
    e("s_add_u32 s31, s31, 16384")
    e("s_and_b32 s31, s31, 0xffff")
    e(f"v_mov_b32 v{vKc}, v{vKn}")
    e(f"v_mov_b32 v{vVc}, v{vVn}")
    e(f"v_add_u32 v{vKn}, s31, v12")
    e(f"v_mad_u32_u24 v{vVn}, v14, s31, v13")
    e("s_sub_u32 s33, s33, 1")
    e("s_cmp_lg_u32 s33, 0")
    e(f"s_cbranch_scc1 {L_loop}")
    stamp(k, 3)
    e("s_waitcnt lgkmcnt(0)")
    e("s_nop 3")
    L_fin = k.newlabel("afin"); L_slow = k.newlabel("aslow")
    e(f"s_mov_b32 s36, {hx(f32bits(2.0**-60))}")
    e(f"s_mov_b32 s37, {hx(f32bits(2.0**60))}")
    e(f"s_mov_b32 s38, {hx(f32bits(2.0**120))}")
    for q in range(2):
        o = O[q]
        e(f"v_max3_f32 v{16+q}, abs(v{o}), abs(v{o+1}), abs(v{o+2})")
        e(f"v_max3_f32 v{16+q}, v{16+q}, abs(v{o+3}), abs(v{o+4})")
        e(f"v_max3_f32 v{16+q}, v{16+q}, abs(v{o+5}), abs(v{o+6})")
        e(f"v_max_f32 v{16+q}, v{16+q}, abs(v{o+7})".replace("v_max_f32", "v_max_f32_e64"))
    for q in range(2):
        o = O[q]
        e(f"v_add_f32 v{18+q}, v{o}, v{o+1}")
        for r in range(2, 8): e(f"v_add_f32 v{18+q}, v{18+q}, v{o+r}")
    e(f"v_cmp_ge_f32 s[40:41], v{O0+8}, s36")
    e(f"v_cmp_le_f32 s[42:43], v{O0+8}, s37")
    e(f"v_cmp_ge_f32 s[44:45], v{O1+8}, s36")
    e(f"v_cmp_le_f32 s[46:47], v{O1+8}, s37")
    e(f"v_cmp_le_f32 s[48:49], v16, s38")
    e(f"v_cmp_le_f32 s[50:51], v17, s38")
    e(f"v_cmp_o_f32 s[52:53], v18, v19")
    e("s_and_b64 s[40:41], s[40:41], s[42:43]")
    e("s_and_b64 s[44:45], s[44:45], s[46:47]")
    e("s_and_b64 s[48:49], s[48:49], s[50:51]")
    e("s_and_b64 s[40:41], s[40:41], s[44:45]")
    e("s_and_b64 s[48:49], s[48:49], s[52:53]")
    e("s_and_b64 s[40:41], s[40:41], s[48:49]")
    e("s_cmp_eq_u64 s[40:41], -1")
    e(f"s_cbranch_scc0 {L_slow}")
    k.label(L_fin)
    e(f"s_add_u32 s28, s17, {hx(WS_OF)}")
    e(f"s_add_u32 s29, s28, 32768")
    e(f"v_rcp_f32 v16, v{O0+8}")
    e(f"v_rcp_f32 v18, v{O1+8}")
    e("s_nop 0")
    e("v_mov_b32 v17, v16")
    e("v_mov_b32 v19, v18")
    for q in range(2):
        o = O[q]
        for r in range(0, 8, 2):
            e(f"v_pk_mul_f32 v[{o+r}:{o+r+1}], v[{o+r}:{o+r+1}], v[{16+2*q}:{17+2*q}]")
        for r in range(4):
            e(f"v_cvt_pk_bf16_f32 v{20+4*q+r}, v{o+2*r}, v{o+2*r+1}")
        e(f"buffer_store_dwordx4 v[{20+4*q}:{23+4*q}], v12, s[20:23], s{28+q} offen{store_mod}")
    if publish: publish(k)
    e("s_endpgm")

    k.label(L_slow)
    e("s_waitcnt vmcnt(0)")
    e("v_and_b32 v13, 15, v2")
    e("v_lshlrev_b32 v13, 4, v13")
    e("v_lshrrev_b32 v15, 5, v2")
    e("v_lshl_add_u32 v13, v15, 8, v13")
    e("v_add_u32 v13, 8192, v13")
    e("v_cmp_eq_u32 s[54:55], 0, v14")
    e("v_mov_b32 v108, 0x3f803f80")
    e("v_mov_b32 v110, 0xff800000")
    e("v_mov_b32 v111, 0xff800000")
    for r in range(16):
        e(f"v_mov_b32 v{O0+r}, 0")
        e(f"v_mov_b32 v{O1+r}, 0")
    e("s_mov_b32 s33, 0")
    L_sl = k.newlabel("asl")
    k.label(L_sl)
    e("s_lshr_b32 s34, s33, 3")
    e("s_lshl_b32 s34, s34, 14")
    e("s_and_b32 s35, s33, 7")
    e("s_lshl_b32 s35, s35, 10")
    e("s_add_u32 s34, s34, s35")
    e("buffer_load_dwordx4 v[80:83], v12, s[24:27], s34 offen")
    e("buffer_load_dwordx4 v[88:91], v13, s[24:27], s34 offen")
    e("buffer_load_dwordx4 v[92:95], v13, s[24:27], s34 offen offset:512")
    e("s_waitcnt vmcnt(0)")
    for r in range(8): e(f"v_cndmask_b32 v{88+r}, v{88+r}, v108, s[54:55]")
    for q in range(2):
        X = S[q]; m = 110 + q; o = O[q]
        e(f"v_mfma_f32_32x32x16_bf16 v[{X}:{X+15}], v[80:83], v[{Q[q]}:{Q[q]+3}], 0")
        e("s_nop 11")
        e(f"v_max3_f32 v112, v{X}, v{X+1}, v{X+2}")
        for r in range(3, 15, 2): e(f"v_max3_f32 v112, v112, v{X+r}, v{X+r+1}")
        e(f"v_max_f32 v112, v112, v{X+15}")
        e("v_mov_b32 v113, v112")
        e("s_nop 1")
        e("v_permlane32_swap_b32 v112, v113")
        e("s_nop 1")
        e("v_max3_f32 v112, v112, v113, v" + str(m))
        e(f"v_cmp_eq_f32 vcc, v{m}, v112")
        e(f"v_sub_f32 v113, v{m}, v112")
        e("v_exp_f32 v113, v113")
        e("s_nop 0")
        e("v_cndmask_b32 v113, v113, 1.0, vcc")
        e(f"v_mov_b32 v{m}, v112")
        e("v_cmp_eq_f32 vcc, 0xff800000, v112")
        e("s_nop 1")
        e("v_cndmask_b32 v112, v112, 0, vcc")
        for r in range(16): e(f"v_mul_f32 v{o+r}, v113, v{o+r}")
        for r in range(16): e(f"v_sub_f32 v{X+r}, v{X+r}, v112")
        for r in range(16): e(f"v_exp_f32 v{X+r}, v{X+r}")
        e("s_nop 1")
        e(f"v_smfmac_f32_32x32x32_bf16 v[{o}:{o+15}], v[88:91], v[{X}:{X+7}], v3")
        e(f"v_smfmac_f32_32x32x32_bf16 v[{o}:{o+15}], v[92:95], v[{X+8}:{X+15}], v3")
    e("s_nop 11")
    e("s_add_u32 s33, s33, 1")
    e("s_cmp_lt_u32 s33, 64")
    e(f"s_cbranch_scc1 {L_sl}")
    e(f"s_branch {L_fin}")

def gen_attn(name="attn_kernel"):
    k = Kernel(name)
    L_end = k.newlabel("end")
    k.e("s_cmp_ge_u32 s2, 256")
    k.e(f"s_cbranch_scc1 {L_end}")
    emit_attn(k)
    k.label(L_end)
    k.e("s_endpgm")
    prof_finish(k, 1)
    return k

if __name__ == "__main__":
    k = gen_attn()
    for x in k.check_hazards(): print(x)
    for x in k.check_waits(): print(x)
    print(k.max_regs(), len(k.lines))
```

```python
from asmlib import *
import math, struct

WS_XN = 0x000000
WS_QF = 0x200000
WS_KV = 0x400000
WS_HF = 0x500000
WS_OF = 0xC00000
WS_FL = 0xE00000
WS_FLH = WS_FL
WS_FLO = WS_FL + 4096
WS_SIZE = 0x1000000

def f32bits(x): return struct.unpack("<I", struct.pack("<f", x))[0]
def hx(x): return "0x%x" % (x & 0xffffffff)
QSCALE = 0.25 * math.log2(math.e)

def srd(k, d, base, size):
    if d != base:
        k.e(f"s_mov_b32 s{d}, s{base}")
        k.e(f"s_mov_b32 s{d+1}, s{base+1}")
    k.e(f"s_mov_b32 s{d+2}, {hx(size)}")
    k.e(f"s_mov_b32 s{d+3}, 0x20000")

def kernel_header(name):
    return f""".globl {name}
.p2align 8
.type {name},@function
{name}:
"""

def kernel_desc(name, vgpr, sgpr, agpr=0):
    accum = (vgpr + 3) // 4 * 4
    nfv = accum + agpr if agpr else vgpr
    return f""".amdhsa_kernel {name}
  .amdhsa_next_free_vgpr {nfv}
  .amdhsa_next_free_sgpr {sgpr}
  .amdhsa_accum_offset {accum}
  .amdhsa_group_segment_fixed_size 0
  .amdhsa_kernarg_size 96
  .amdhsa_user_sgpr_count 2
  .amdhsa_user_sgpr_kernarg_segment_ptr 1
  .amdhsa_system_sgpr_workgroup_id_x 1
.end_amdhsa_kernel
"""

PROF = False
WS_PROF = 0x2000000
def stamp(k, idx):
    if PROF:
        k.e(f"s_memtime s[{64+2*idx}:{65+2*idx}]")
        k.e("s_waitcnt lgkmcnt(0)")
def prof_begin(k):
    if PROF:
        k.e("s_memrealtime s[80:81]")
        k.e("s_memtime s[64:65]")
def prof_finish(k, slot):
    if not PROF: return
    lab = k.newlabel("prof")
    idxs = [i for i, l in enumerate(k.lines) if l.strip() == "s_endpgm" and not (i > 0 and "buffer_load_dword v32" in k.lines[i-1])]
    for i in idxs[:-1]: k.lines[i] = f"  s_branch {lab}"
    k.label(lab)
    e = k.e
    e("s_waitcnt vmcnt(0) lgkmcnt(0)")
    e("s_memtime s[78:79]")
    e("s_memrealtime s[82:83]")
    e("s_getreg_b32 s84, hwreg(HW_REG_XCC_ID)")
    e("s_load_dwordx2 s[86:87], s[0:1], 88")
    e("v_lshrrev_b32 v1, 6, v0")
    e("s_lshl_b32 s85, s2, 9")
    e(f"s_add_u32 s85, s85, {hx(WS_PROF + slot * 0x80000)}")
    e("v_lshlrev_b32 v1, 6, v1")
    e("v_add_u32 v1, s85, v1")
    e("s_waitcnt lgkmcnt(0)")
    for i in range(8): e(f"v_mov_b32 v{4+i}, s{64+2*i}")
    e("v_mov_b32 v12, s80"); e("v_mov_b32 v13, s82"); e("v_mov_b32 v14, s84"); e("v_mov_b32 v15, 0")
    e("v_and_b32 v2, 63, v0")
    e("v_cmp_eq_u32 vcc, 0, v2")
    e("s_and_saveexec_b64 s[88:89], vcc")
    e("global_store_dwordx4 v1, v[4:7], s[86:87]")
    e("global_store_dwordx4 v1, v[8:11], s[86:87] offset:16")
    e("global_store_dwordx4 v1, v[12:15], s[86:87] offset:32")
    e("s_endpgm")


def poll_flags(k, vaddr, srd_, soff, vtmp, scnt="s60", sleep=2):
    L = k.newlabel("poll"); Ld = k.newlabel("polld")
    k.e(f"s_mov_b32 {scnt}, 0x40000")
    k.label(L)
    k.e(f"buffer_load_dword v{vtmp}, v{vaddr}, s[{srd_}:{srd_+3}], {soff} offen sc1")
    k.e("s_waitcnt vmcnt(0)")
    k.e(f"v_cmp_ne_u32 vcc, 0, v{vtmp}")
    k.e("s_cmp_eq_u64 vcc, -1")
    k.e(f"s_cbranch_scc1 {Ld}")
    k.e(f"s_sleep {sleep}")
    k.e(f"s_sub_u32 {scnt}, {scnt}, 1")
    k.e(f"s_cmp_lg_u32 {scnt}, 0")
    k.e(f"s_cbranch_scc1 {L}")
    k.label(Ld)

def set_flag(k, srd_, soff, vt0, vt1, ssave):
    k.e(f"v_mov_b32 v{vt0}, 0")
    k.e(f"v_mov_b32 v{vt1}, 1")
    k.e("s_waitcnt vmcnt(0)")
    k.e(f"s_mov_b64 s[{ssave}:{ssave+1}], exec")
    k.e("s_mov_b64 exec, 1")
    k.e(f"buffer_store_dword v{vt1}, v{vt0}, s[{srd_}:{srd_+3}], {soff} offen sc1")
    k.e(f"s_mov_b64 exec, s[{ssave}:{ssave+1}]")
```

```python
from common import *

U_BUF = 28928
U_UP = 14464
U_LDS = 2 * U_BUF

class Q:
    def __init__(self): self.q = []
    def push(self, tag): self.q.append(tag)
    def need(self, tags):
        idx = [i for i, t in enumerate(self.q) if t in tags]
        if not idx: return None
        n = len(self.q) - 1 - max(idx)
        self.q = self.q[max(idx) + 1:]
        return n

import os
EXP = os.environ.get("EXP", "")
def emit_up(k, wgreg="s2", store_mod="", prio=None):
    e = k.e
    prof_begin(k)
    e("s_load_dwordx4 s[4:7], s[0:1], 48")
    e("s_load_dwordx2 s[12:13], s[0:1], 88")
    e(f"s_and_b32 s14, {wgreg}, 1")
    e("s_lshl_b32 s14, s14, 3")
    e(f"s_bfe_u32 s15, {wgreg}, 0x30003")
    e("s_add_u32 s14, s14, s15")
    e(f"s_bfe_u32 s15, {wgreg}, 0x20001")
    e("s_lshl_b32 s15, s15, 2")
    e(f"s_lshr_b32 s17, {wgreg}, 6")
    e("s_add_u32 s15, s15, s17")
    e("v_lshrrev_b32 v1, 6, v0")
    e("v_and_b32 v2, 63, v0")
    e("v_readfirstlane_b32 s16, v1")
    e("v_lshlrev_b32 v3, 4, v2")
    e("s_movk_i32 s18, 4682")
    e("s_movk_i32 s19, 3360")
    for n in range(7):
        e(f"v_add_u32 v11, {64*n}, v2")
        e(f"v_mul_u32_u24 v12, s18, v11")
        e(f"v_lshrrev_b32 v12, 16, v12")
        e(f"v_lshlrev_b32 v11, 4, v11")
        e(f"v_mad_u32_u24 v{4+n}, v12, s19, v11")
        if n % 4: e(f"v_subrev_u32 v{4+n}, {(n%4)*1024}, v{4+n}")
    e("v_lshrrev_b32 v12, 5, v2")
    e("v_bfe_u32 v13, v2, 2, 2")
    e("v_lshl_add_u32 v12, v12, 3, v13")
    e("v_mul_u32_u24 v11, 224, v12")
    e("v_and_b32 v12, 3, v2")
    e("v_lshl_add_u32 v11, v12, 3, v11")
    e("v_bfe_u32 v12, v2, 4, 1")
    e(f"v_mul_u32_u24 v12, {U_UP}, v12")
    e("v_add_u32 v11, v11, v12")
    e("s_lshr_b32 s18, s16, 1")
    e("s_mul_i32 s20, s18, 114688")
    e("s_mul_i32 s19, s15, 224")
    e("s_add_u32 s20, s20, s19")
    e("s_mul_i32 s21, s18, 7168")
    e("s_and_b32 s18, s16, 1")
    e(f"s_mul_i32 s19, s18, {U_UP}")
    e("s_add_u32 s21, s21, s19")
    e("s_add_u32 s22, s21, 4096")
    e(f"s_add_u32 s23, s21, {U_BUF}")
    e(f"s_add_u32 s33, s21, {U_BUF + 4096}")
    e("s_lshl_b32 s34, s14, 2")
    e("s_add_u32 s34, s34, s16")
    e("s_mul_i32 s35, s34, 114688")
    e("s_lshl_b32 s34, s34, 15")
    if WS_XN: e(f"s_add_u32 s34, s34, {hx(WS_XN)}")
    e("s_cmp_eq_u32 s18, 1")
    e("s_waitcnt lgkmcnt(0)")
    e("s_cselect_b32 s24, s6, s4")
    e("s_cselect_b32 s25, s7, s5")
    e(f"s_mov_b32 s26, {512*3584}")
    e("s_mov_b32 s27, 0x20000")
    srd(k, 28, 12, WS_SIZE)
    ACC = 128; AF = 16; BF = 48
    vm = Q(); lg = Q()
    def dma(buf, tag):
        e(f"s_mov_b32 m0, s{21 if buf == 0 else 23}")
        e("s_nop 0")
        for n in range(4):
            e(f"buffer_load_dwordx4 v{4+n}, s[24:27], s20 offen offset:{n*1024} lds"); vm.push(tag)
        e(f"s_mov_b32 m0, s{22 if buf == 0 else 33}")
        e("s_nop 0")
        for n in range(4, 7):
            e(f"buffer_load_dwordx4 v{4+n}, s[24:27], s20 offen offset:{(n-4)*1024} lds"); vm.push(tag)
        e(f"s_add_u32 s20, s20, {64*3584}")
    def ldB(buf, ks, tag):
        b = BF + 16 * buf + 4 * ks
        e(f"buffer_load_dwordx4 v[{b}:{b+3}], v3, s[28:31], s34 offen offset:{ks*1024}"); vm.push(tag)
        if ks == 3: e("s_add_u32 s34, s34, 4096")
    def rdA(buf, ks, t):
        a = AF + 4 * t
        if "nolds" in EXP and t > 0: return
        for q in range(2):
            e(f"ds_read_b64_tr_b16 v[{a+2*q}:{a+2*q+1}], v11 offset:{buf*U_BUF + (16*ks+4*q)*224 + t*32}")
            lg.push(("A", t))
    for st in range(2):
        if st == 0:
            dma(0, ("D", 0))
            for ks in range(4): ldB(0, ks, ("B", 0, ks))
        else:
            for ks in range(3): ldB(1, ks, ("B", 1, ks))
            dma(1, ("D", 1))
            ldB(1, 3, ("B", 1, 3))
    for r in range(112): e(f"v_mov_b32 v{ACC+r}, 0")
    n = vm.need([("D", 0), ("B", 0, 3)])
    stamp(k, 1)
    e(f"s_waitcnt vmcnt({n})")
    e("s_barrier")
    stamp(k, 2)
    e("s_waitcnt lgkmcnt(0)") if PROF else None
    for t in range(7): rdA(0, 0, t)
    e("s_mov_b32 s36, 4")
    if prio: e(f"s_setprio {prio[0]}")
    L = k.newlabel("uloop")
    k.label(L)
    snap = None
    for rep in range(2):
        emit = rep == 0
        saved = k.lines
        if not emit: k.lines = []
        for buf in range(2):
            st = 2 * rep + buf
            for ks in range(4):
                b = BF + 16 * buf + 4 * ks
                for t in range(7):
                    n = lg.need([("A", t)])
                    if n is not None: e(f"s_waitcnt lgkmcnt({n})")
                    a = AF + 4 * t
                    e(f"v_mfma_f32_32x32x16_bf16 v[{ACC+16*t}:{ACC+16*t+15}], v[{a}:{a+3}], v[{b}:{b+3}], v[{ACC+16*t}:{ACC+16*t+15}]")
                    if ks < 3: rdA(buf, ks + 1, t)
                    elif t == 3:
                        n = vm.need([("D", st + 1), ("B", st + 1, 3)])
                        lg.q = []
                        e(f"s_waitcnt vmcnt({n}) lgkmcnt(0)")
                        e("s_barrier")
                        for tt in range(4): rdA(1 - buf, 0, tt)
                        if "nodma" in EXP:
                            for _ in range(7): vm.push(("D", st + 2)); e("buffer_load_dwordx4 v4, s[24:27], s26 offen lds")
                        else: dma(buf, ("D", st + 2))
                    elif t > 3: rdA(1 - buf, 0, t)
                ldB(buf, ks, ("B", st + 2, ks))
        if emit:
            body = list(k.lines[len(saved) if False else 0:])
            first = [l for l in k.lines[k.lines.index(L + ":") + 1:]]
        else:
            assert k.lines == first, "loop not in steady state"
            k.lines = saved
    e("s_sub_u32 s36, s36, 1")
    e("s_cmp_lg_u32 s36, 0")
    e(f"s_cbranch_scc1 {L}")
    if prio: e(f"s_setprio {prio[1]}")
    stamp(k, 3)
    c1 = -2.0 * math.sqrt(2.0 / math.pi) * math.log2(math.e)
    c2 = c1 * 0.044715
    e(f"s_mov_b32 s38, {hx(f32bits(c1))}")
    e("s_mov_b32 s39, s38")
    e(f"s_mov_b32 s40, {hx(f32bits(c2))}")
    e("s_mov_b32 s41, s40")
    e("s_mov_b32 s42, 1.0")
    e("s_mov_b32 s43, 1.0")
    e(f"v_mov_b32 v12, s38")
    e(f"v_mov_b32 v13, s38")
    e("s_mul_i32 s37, s15, 7168")
    e("s_add_u32 s35, s35, s37")
    e(f"s_add_u32 s35, s35, {hx(WS_HF)}")
    e("s_add_u32 s37, s35, 4096")
    e("s_waitcnt vmcnt(0) lgkmcnt(0)")
    T = 16
    for t in range(7):
        A = ACC + 16 * t
        tt = T + 16 * (t % 2)
        for p in range(4):
            a = A + 2 * p
            e(f"v_pk_mul_f32 v[{tt+2*p}:{tt+2*p+1}], v[{a}:{a+1}], v[{a}:{a+1}]")
        for p in range(4):
            e(f"v_pk_fma_f32 v[{tt+2*p}:{tt+2*p+1}], v[{tt+2*p}:{tt+2*p+1}], s[40:41], v[12:13]")
        for p in range(4):
            a = A + 2 * p
            e(f"v_pk_mul_f32 v[{tt+2*p}:{tt+2*p+1}], v[{tt+2*p}:{tt+2*p+1}], v[{a}:{a+1}]")
        for r in range(8): e(f"v_exp_f32 v{tt+r}, v{tt+r}")
        for p in range(4):
            a = A + 2 * p
            e(f"v_pk_mul_f32 v[{a}:{a+1}], v[{a}:{a+1}], v[{a+8}:{a+9}]")
        for p in range(4):
            e(f"v_pk_add_f32 v[{tt+2*p}:{tt+2*p+1}], v[{tt+2*p}:{tt+2*p+1}], s[42:43]")
        for r in range(8): e(f"v_rcp_f32 v{tt+r}, v{tt+r}")
        e("s_nop 0")
        for p in range(4):
            a = A + 2 * p
            e(f"v_pk_mul_f32 v[{a}:{a+1}], v[{a}:{a+1}], v[{tt+2*p}:{tt+2*p+1}]")
        for p in range(4):
            a = A + 2 * p
            e(f"v_cvt_pk_bf16_f32 v{tt+8+p}, v{a}, v{a+1}")
        e(f"buffer_store_dwordx4 v[{tt+8}:{tt+11}], v3, s[28:31], s{35 if t < 4 else 37} offen offset:{(t%4)*1024}{store_mod}")

D_W = 17408
D_LDS = 4 * D_W
D_QS = 1088

def emit_down(k, wgreg="s2", wait_h=None, wait_o=None, load_mod="", first=True, sb=1, prio=None):
    e = k.e
    if first: prof_begin(k)
    e("s_load_dwordx2 s[4:5], s[0:1], 64")
    e("s_load_dwordx2 s[6:7], s[0:1], 32")
    e("s_load_dwordx2 s[8:9], s[0:1], 0")
    e("s_load_dwordx2 s[10:11], s[0:1], 72")
    e("s_load_dwordx2 s[12:13], s[0:1], 88")
    e(f"s_and_b32 s14, {wgreg}, 7")
    e("s_lshl_b32 s14, s14, 2")
    e(f"s_lshr_b32 s15, {wgreg}, 6")
    e("s_add_u32 s14, s14, s15")
    e(f"s_bfe_u32 s15, {wgreg}, 0x30003")
    e("v_lshrrev_b32 v1, 6, v0")
    e("v_and_b32 v2, 63, v0")
    e("v_readfirstlane_b32 s16, v1")
    e("v_lshlrev_b32 v3, 4, v2")
    e("v_add_u32 v4, 114688, v3")
    e("v_add_u32 v5, 32768, v3")
    e("v_lshrrev_b32 v8, 3, v2")
    e("v_and_b32 v9, 7, v2")
    e("v_lshlrev_b32 v10, 1, v8")
    e("v_and_b32 v10, 4, v10")
    e("v_xor_b32 v10, v10, v9")
    e("v_lshlrev_b32 v10, 4, v10")
    e("v_lshl_add_u32 v6, v8, 10, v10")
    e("v_add_u32 v7, 7168, v6")
    e("v_lshlrev_b32 v14, 4, v9")
    e("v_lshl_add_u32 v14, v8, 10, v14")
    e(f"v_mul_u32_u24 v15, {D_QS}, v9")
    e("v_lshl_add_u32 v15, v8, 4, v15")
    e(f"s_mul_i32 s17, s16, {D_W}")
    e("v_lshrrev_b32 v10, 5, v2")
    e("v_bfe_u32 v11, v2, 2, 2")
    e("v_lshl_add_u32 v10, v10, 2, v11")
    e("v_lshlrev_b32 v10, 7, v10")
    e("v_and_b32 v12, 1, v2")
    e("v_lshl_add_u32 v10, v12, 3, v10")
    e("v_add_u32 v10, s17, v10")
    e("v_bfe_u32 v12, v2, 4, 1")
    e("v_bfe_u32 v13, v2, 1, 1")
    e("v_lshl_add_u32 v12, v12, 1, v13")
    e("v_lshlrev_b32 v11, 1, v11")
    e("v_and_b32 v11, 4, v11")
    e("v_xor_b32 v12, v12, v11")
    e("v_lshl_add_u32 v8, v12, 4, v10")
    e("v_xor_b32 v12, 4, v12")
    e("v_lshl_add_u32 v9, v12, 4, v10")
    e("v_add_u32 v10, s17, v3")
    e(f"s_mul_i32 s18, s16, {28*16*1024}")
    e("s_lshl_b32 s20, s15, 7")
    e("s_add_u32 s18, s18, s20")
    e(f"s_mul_i32 s19, s14, {2*114688}")
    e(f"s_mul_i32 s21, s16, {28*1024}")
    e("s_add_u32 s19, s19, s21")
    e(f"s_add_u32 s19, s19, {hx(WS_HF)}")
    e("s_lshl_b32 s22, s16, 17")
    e("s_add_u32 s22, s22, s20")
    e("s_lshl_b32 s23, s14, 16")
    e("s_lshl_b32 s21, s16, 13")
    e("s_add_u32 s23, s23, s21")
    e(f"s_add_u32 s23, s23, {hx(WS_OF)}")
    e("s_lshl_b32 s44, s14, 16")
    e("s_lshl_b32 s21, s16, 14")
    e("s_add_u32 s44, s44, s21")
    e("s_add_u32 s44, s44, s20")
    e("s_add_u32 s45, s44, 8192")
    e("s_waitcnt lgkmcnt(0)")
    srd(k, 24, 4, 1792 * 1024)
    srd(k, 28, 12, WS_SIZE)
    srd(k, 32, 6, 512 * 1024)
    srd(k, 36, 8, 2048 * 1024)
    srd(k, 40, 10, 2048 * 1024)
    FA = 128; SAc = 192; AF = 16; BF = 32
    vm = Q(); lg = Q()
    R = 7
    def dma(slot, srdw, soff, tag):
        e(f"s_add_u32 m0, s17, {slot*2048}")
        e("s_nop 0")
        e(f"buffer_load_dwordx4 v6, s[{srdw}:{srdw+3}], {soff} offen lds"); vm.push(tag)
        e(f"buffer_load_dwordx4 v7, s[{srdw}:{srdw+3}], {soff} offen offset:1024 lds"); vm.push(tag)
        e(f"s_add_u32 {soff}, {soff}, 16384")
    def ldB(slot, v1, soff, tag):
        b = BF + 8 * slot
        e(f"buffer_load_dwordx4 v[{b}:{b+3}], v3, s[28:31], {soff} offen{load_mod}"); vm.push(tag)
        e(f"buffer_load_dwordx4 v[{b+4}:{b+7}], v{v1}, s[28:31], {soff} offen{load_mod}"); vm.push(tag)
        e(f"s_add_u32 {soff}, {soff}, 1024")
    def rdA(slot, ab):
        for nt in range(2):
            a = AF + 8 * ab + 4 * nt
            for q in range(2):
                e(f"ds_read_b64_tr_b16 v[{a+2*q}:{a+2*q+1}], v{8+nt} offset:{slot*2048 + q*1024}")
                lg.push(("A", ab))
    def mfmas(acc, ab, slot, first=False):
        for tbh in range(2):
            for nt in range(2):
                c = acc + 16 * (nt + 2 * tbh); a = AF + 8 * ab + 4 * nt; b = BF + 8 * slot + 4 * tbh
                cs = "0" if first else f"v[{c}:{c+15}]"
                e(f"v_mfma_f32_32x32x16_bf16 v[{c}:{c+15}], v[{a}:{a+3}], v[{b}:{b+3}], {cs}")
    for s in range(R): dma(s, 24, "s18", ("D", s))
    if wait_h: wait_h(k)
    for s in range(R): ldB(s, 4, "s19", ("B", s))
    for r in range(64): e(f"v_mov_b32 v{FA+r}, 0")
    stamp(k, sb)
    e(f"s_waitcnt vmcnt({vm.need([('D', 0)])})")
    rdA(0, 0)
    e("s_mov_b32 s46, 3")
    if prio: e(f"s_setprio {prio[0]}")
    L = k.newlabel("dloop")
    k.label(L)
    def body(last):
        for s in range(R):
            ab = s % 2
            if not last:
                n_first = 2 * (R - 1 - s) + 4 * s
                n = min(n_first, 2 + 4 * (R - 2))
            else:
                n = max(0, 2 + 4 * (R - 2 - s)) if s < R - 1 else 0
            e(f"s_waitcnt vmcnt({n}) lgkmcnt(0)")
            nxt = (s + 1) % R
            if s < R - 1:
                rdA(nxt, nxt % 2)
                mfmas(FA, ab, s)
            else:
                mfmas(FA, ab, s)
                if not last: rdA(0, 0)
            if not last:
                dma(s, 24, "s18", ("D", s + R))
                ldB(s, 4, "s19", ("B", s + R))
    body(False)
    e("s_sub_u32 s46, s46, 1")
    e("s_cmp_lg_u32 s46, 0")
    e(f"s_cbranch_scc1 {L}")
    body(True)
    if prio: e(f"s_setprio {prio[1]}")
    stamp(k, sb + 1)
    e("s_waitcnt vmcnt(0) lgkmcnt(0)")
    e("buffer_load_dwordx4 v[96:99], v14, s[36:39], s44 offen")
    e("buffer_load_dwordx4 v[100:103], v14, s[36:39], s45 offen")
    def red_write(acc):
        for t in range(4):
            for qd in range(4):
                r = acc + 16 * t + 4 * qd
                e(f"ds_write_b128 v10, v[{r}:{r+3}] offset:{(4*t+qd)*D_QS}")
    def red_read(dst):
        for p in range(2):
            for src in range(4):
                for h in range(2):
                    r = BF + 32 * p + 8 * src + 4 * h
                    e(f"ds_read_b128 v[{r}:{r+3}], v11 offset:{src*D_W + h*512 + p*128}")
        for p in range(2):
            e(f"s_waitcnt lgkmcnt({8*(1-p)})")
            b = BF + 32 * p
            for j in range(0, 8, 2):
                e(f"v_pk_add_f32 v[{b+j}:{b+j+1}], v[{b+j}:{b+j+1}], v[{b+8+j}:{b+9+j}]")
                e(f"v_pk_add_f32 v[{b+16+j}:{b+17+j}], v[{b+16+j}:{b+17+j}], v[{b+24+j}:{b+25+j}]")
            for j in range(0, 8, 2):
                e(f"v_pk_add_f32 v[{dst+8*p+j}:{dst+8*p+j+1}], v[{b+j}:{b+j+1}], v[{b+16+j}:{b+17+j}]")
    e("s_lshr_b32 s47, s16, 1")
    e(f"s_mul_i32 s47, s47, {8*D_QS}")
    e("s_and_b32 s48, s16, 1")
    e("s_lshl_b32 s48, s48, 8")
    e("s_add_u32 s47, s47, s48")
    e("v_add_u32 v11, s47, v15")
    e("s_nop 4")
    red_write(FA)
    e("s_waitcnt lgkmcnt(0)")
    e("s_barrier")
    G = 104
    red_read(G)
    e("s_barrier")
    vm.q = []
    for s in range(8): dma(s, 32, "s22", ("D", s))
    e(f"s_mov_b32 s48, {hx(f32bits(-math.log2(math.e)))}")
    e("s_mov_b32 s49, s48")
    e("s_mov_b32 s50, 1.0")
    e("s_mov_b32 s51, 1.0")
    for j in range(0, 16, 2): e(f"v_pk_mul_f32 v[{FA+j}:{FA+j+1}], v[{G+j}:{G+j+1}], s[48:49]")
    for j in range(16): e(f"v_exp_f32 v{FA+j}, v{FA+j}")
    e("s_nop 0")
    for j in range(0, 16, 2): e(f"v_pk_add_f32 v[{FA+j}:{FA+j+1}], v[{FA+j}:{FA+j+1}], s[50:51]")
    for j in range(16): e(f"v_rcp_f32 v{FA+j}, v{FA+j}")
    e("s_nop 0")
    for j in range(0, 16, 2): e(f"v_pk_mul_f32 v[{G+j}:{G+j+1}], v[{G+j}:{G+j+1}], v[{FA+j}:{FA+j+1}]")
    stamp(k, sb + 2)
    e("s_waitcnt lgkmcnt(0)") if PROF else None
    if wait_o: wait_o(k)
    for s in range(8): ldB(s, 5, "s23", ("B", s))
    lg.q = []
    e(f"s_waitcnt vmcnt({vm.need([('D', 7)])})")
    rdA(0, 0)
    for s in range(8):
        if s < 7: rdA(s + 1, (s + 1) % 2)
        n = vm.need([("B", s)]); m = lg.need([("A", s % 2)]) if s == 7 else 4
        if s < 7: lg.q = lg.q[-4:]
        e(f"s_waitcnt vmcnt({n}) lgkmcnt({m})")
        mfmas(SAc, s % 2, s, first=(s == 0))
    e("s_nop 11")
    red_write(SAc)
    e("s_waitcnt lgkmcnt(0)")
    e("s_barrier")
    red_read(FA)
    e("s_mov_b32 s48, 0xffff0000")
    for p in range(2):
        for r in range(4):
            x = 96 + 4 * p + r
            e(f"v_lshlrev_b32 v{16+2*r}, 16, v{x}")
            e(f"v_and_b32 v{17+2*r}, s48, v{x}")
        for r in range(4):
            j = 8 * p + 2 * r
            e(f"v_pk_fma_f32 v[{16+2*r}:{17+2*r}], v[{FA+j}:{FA+j+1}], v[{G+j}:{G+j+1}], v[{16+2*r}:{17+2*r}]")
        for r in range(4):
            e(f"v_cvt_pk_bf16_f32 v{24+4*p+r}, v{16+2*r}, v{17+2*r}")
        e(f"buffer_store_dwordx4 v[{24+4*p}:{27+4*p}], v14, s[40:43], s{44+p} offen")
    e("s_endpgm")

def gen_up(name="up_kernel"):
    k = Kernel(name)
    L_end = k.newlabel("end")
    k.e("s_cmp_ge_u32 s2, 256")
    k.e(f"s_cbranch_scc1 {L_end}")
    emit_up(k)
    k.e("s_endpgm")
    k.label(L_end)
    k.e("s_endpgm")
    prof_finish(k, 2)
    return k

def gen_down(name="down_kernel"):
    k = Kernel(name)
    L_end = k.newlabel("end")
    k.e("s_cmp_ge_u32 s2, 256")
    k.e(f"s_cbranch_scc1 {L_end}")
    emit_down(k)
    k.label(L_end)
    k.e("s_endpgm")
    prof_finish(k, 3)
    return k

if __name__ == "__main__":
    assert all((c * 4682) >> 16 == c // 14 for c in range(448))
    for k in (gen_up(), gen_down()):
        for x in k.check_hazards(): print(x)
        for x in k.check_waits(): print(x)
        print(k.name, k.max_regs(), len(k.lines))
```

```python
from common import *

K1_WQ = 0
K1_XN = 65536
K1_WKV = 65536 + 2 * 33792
K1_LDS = K1_WKV + 16384

def gen_k1(name="ln_qkv_kernel"):
    k = Kernel(name)
    e = k.e
    L_end = k.newlabel("end")
    e("s_cmp_ge_u32 s2, 256")
    e(f"s_cbranch_scc1 {L_end}")
    prof_begin(k)
    e("s_load_dwordx4 s[4:7], s[0:1], 0")
    e("s_load_dwordx4 s[8:11], s[0:1], 16")
    e("s_load_dwordx2 s[12:13], s[0:1], 88")
    e("s_and_b32 s14, s2, 7")
    e("s_lshl_b32 s14, s14, 2")
    e("s_lshr_b32 s15, s2, 6")
    e("s_add_u32 s14, s14, s15")
    e("s_lshr_b32 s15, s2, 3")
    e("s_and_b32 s15, s15, 7")
    e("v_lshrrev_b32 v1, 6, v0")
    e("v_and_b32 v2, 63, v0")
    e("v_readfirstlane_b32 s16, v1")
    e("v_lshrrev_b32 v3, 3, v2")
    e("v_and_b32 v4, 7, v2")
    e("v_lshlrev_b32 v5, 10, v3")
    e("v_lshl_add_u32 v6, v4, 4, v5")
    e("v_lshlrev_b32 v7, 1, v3")
    e("v_and_b32 v7, 4, v7")
    e("v_xor_b32 v7, v7, v4")
    e("v_lshl_add_u32 v7, v7, 4, v5")
    e("v_lshlrev_b32 v8, 4, v2")
    e("s_lshl_b32 s17, s14, 16")
    e("s_lshl_b32 s18, s16, 13")
    e("s_add_u32 s17, s17, s18")
    e("s_waitcnt lgkmcnt(0)")
    srd(k, 20, 4, 2048 * 1024)
    srd(k, 24, 6, 512 * 1024)
    X = 16
    for m in range(8):
        e(f"buffer_load_dwordx4 v[{X+4*m}:{X+4*m+3}], v6, s[20:23], s17 offen offset:{m*128}")
    e("s_lshl_b32 s18, s16, 16")
    e("s_lshl_b32 s19, s15, 7")
    e("s_add_u32 s18, s18, s19")
    e("s_lshl_b32 s19, s16, 13")
    for n in range(8):
        e(f"s_mov_b32 m0, s19")
        e(f"s_add_u32 s19, s19, 1024")
        e(f"buffer_load_dwordx4 v7, s[24:27], s18 offen lds")
        if n < 7: e(f"s_add_u32 s18, s18, 8192")
    L_nokv = k.newlabel("nokv")
    e("s_cmp_ge_u32 s15, 4")
    e(f"s_cbranch_scc1 {L_nokv}")
    e("s_cmp_ge_u32 s15, 2")
    e("s_cselect_b32 s28, s10, s8")
    e("s_cselect_b32 s29, s11, s9")
    e("s_mov_b32 s30, 16384")
    e("s_mov_b32 s31, 0x20000")
    e("s_lshl_b32 s18, s16, 11")
    e(f"s_add_u32 s19, s18, {K1_WKV}")
    e("s_mov_b32 m0, s19")
    e("s_nop 0")
    e("buffer_load_dwordx4 v8, s[28:31], s18 offen lds")
    e("buffer_load_dwordx4 v8, s[28:31], s18 offen offset:1024 lds")
    k.label(L_nokv)
    srd(k, 32, 12, WS_SIZE)
    e("s_lshr_b32 s18, s16, 2")
    e("s_mul_i32 s18, s18, 33792")
    e("s_and_b32 s19, s16, 3")
    e("s_lshl_b32 s19, s19, 7")
    e("s_add_u32 s18, s18, s19")
    e(f"s_add_u32 s18, s18, {K1_XN}")
    e("v_mul_u32_u24 v9, 528, v4")
    e("v_lshl_add_u32 v9, v3, 4, v9")
    e("v_add_u32 v9, s18, v9")
    e("s_mov_b32 s36, 0xffff0000")
    F = 48
    stamp(k, 1)
    for m in range(8):
        e(f"s_waitcnt vmcnt({8 + 7 - m})")
        if m == 0 or m == 7: stamp(k, 2 if m == 0 else 3)
        for q in range(4):
            r = X + 4 * m + q
            e(f"v_lshlrev_b32 v{F+8*m+2*q}, 16, v{r}")
            e(f"v_and_b32 v{F+8*m+2*q+1}, s36, v{r}")
    A = 112
    for a in range(4):
        e(f"v_pk_add_f32 v[{A+2*a}:{A+2*a+1}], v[{F+2*a}:{F+2*a+1}], v[{F+8+2*a}:{F+8+2*a+1}]")
    for m in range(2, 8):
        for a in range(4):
            e(f"v_pk_add_f32 v[{A+2*a}:{A+2*a+1}], v[{A+2*a}:{A+2*a+1}], v[{F+8*m+2*a}:{F+8*m+2*a+1}]")
    def reduce8(A, T):
        e(f"v_pk_add_f32 v[{A}:{A+1}], v[{A}:{A+1}], v[{A+2}:{A+3}]")
        e(f"v_pk_add_f32 v[{A+4}:{A+5}], v[{A+4}:{A+5}], v[{A+6}:{A+7}]")
        e(f"v_pk_add_f32 v[{A}:{A+1}], v[{A}:{A+1}], v[{A+4}:{A+5}]")
        e(f"v_add_f32 v{A}, v{A}, v{A+1}")
        e("s_nop 1")
        e(f"v_add_f32_dpp v{A}, v{A}, v{A} quad_perm:[1,0,3,2] row_mask:0xf bank_mask:0xf")
        e("s_nop 1")
        e(f"v_add_f32_dpp v{A}, v{A}, v{A} quad_perm:[2,3,0,1] row_mask:0xf bank_mask:0xf")
        e("s_nop 1")
        e(f"v_add_f32_dpp v{A}, v{A}, v{A} row_half_mirror row_mask:0xf bank_mask:0xf")
    reduce8(A, 0)
    e(f"v_mul_f32 v120, {hx(f32bits(-1.0/512))}, v{A}")
    e(f"v_mov_b32 v121, v120")
    for m in range(8):
        for a in range(4):
            T = X + 2 * ((4 * m + a) % 16)
            e(f"v_pk_add_f32 v[{T}:{T+1}], v[{F+8*m+2*a}:{F+8*m+2*a+1}], v[120:121]")
        for a in range(4):
            T = X + 2 * ((4 * m + a) % 16)
            if m == 0: e(f"v_pk_mul_f32 v[{A+2*a}:{A+2*a+1}], v[{T}:{T+1}], v[{T}:{T+1}]")
            else: e(f"v_pk_fma_f32 v[{A+2*a}:{A+2*a+1}], v[{T}:{T+1}], v[{T}:{T+1}], v[{A+2*a}:{A+2*a+1}]")
    reduce8(A, 0)
    e(f"v_mul_f32 v{A}, {hx(f32bits(1.0/512))}, v{A}")
    e(f"v_cvt_pk_bf16_f32 v{A}, v{A}, v120")
    e(f"v_and_b32 v121, s36, v{A}")
    e(f"v_lshlrev_b32 v{A}, 16, v{A}")
    e(f"v_add_f32 v{A}, {hx(f32bits(1e-5))}, v{A}")
    e(f"v_cvt_pk_bf16_f32 v{A}, v{A}, v{A}")
    e(f"v_lshlrev_b32 v{A}, 16, v{A}")
    e(f"v_sqrt_f32 v{A}, v{A}")
    e("s_nop 0")
    e(f"v_cvt_pk_bf16_f32 v{A}, v{A}, v{A}")
    e(f"v_lshlrev_b32 v{A}, 16, v{A}")
    e(f"v_rcp_f32 v122, v{A}")
    e("s_nop 0")
    e("v_mov_b32 v123, v122")
    e("v_mul_f32 v120, v121, v122")
    e("v_mov_b32 v121, v120")
    for m in range(8):
        for a in range(4):
            p = F + 8 * m + 2 * a
            e(f"v_pk_fma_f32 v[{p}:{p+1}], v[{p}:{p+1}], v[122:123], v[120:121]")
        for a in range(4):
            p = F + 8 * m + 2 * a
            e(f"v_cvt_pk_bf16_f32 v{X+4*m+a}, v{p}, v{p+1}")
        e(f"ds_write_b128 v9, v[{X+4*m}:{X+4*m+3}] offset:{m*4224}")
    e("v_and_b32 v10, 31, v2")
    e("v_lshrrev_b32 v11, 5, v2")
    e("v_mul_u32_u24 v12, 528, v11")
    e("v_lshl_add_u32 v12, v10, 4, v12")
    e("v_bfe_u32 v13, v2, 2, 2")
    e("v_and_b32 v14, 3, v2")
    e("v_lshl_add_u32 v15, v11, 3, v13")
    stamp(k, 4)
    e("s_waitcnt vmcnt(0) lgkmcnt(0)")
    stamp(k, 5)
    e("s_barrier")
    stamp(k, 6)
    L_kv = k.newlabel("kv"); L_cp = k.newlabel("cp")
    e("s_cmp_ge_u32 s16, 6")
    e(f"s_cbranch_scc1 {L_cp}")
    e("s_cmp_ge_u32 s16, 4")
    e(f"s_cbranch_scc1 {L_kv}")
    e("s_and_b32 s18, s16, 1")
    e("s_mul_i32 s19, s18, 33792")
    e(f"s_add_u32 s19, s19, {K1_XN}")
    e("v_add_u32 v12, s19, v12")
    e("s_lshr_b32 s19, s16, 1")
    e("s_lshl_b32 s37, s19, 2")
    e("v_bfe_u32 v1, v2, 4, 1")
    e("v_lshlrev_b32 v1, 1, v1")
    e("v_lshrrev_b32 v3, 1, v14")
    e("v_add3_u32 v1, v1, v3, s37")
    e("v_lshlrev_b32 v3, 1, v13")
    e("v_and_b32 v3, 4, v3")
    e("v_xor_b32 v1, v1, v3")
    e("v_lshlrev_b32 v1, 4, v1")
    e("v_lshl_add_u32 v1, v15, 7, v1")
    e("v_and_b32 v3, 1, v14")
    e("v_lshl_add_u32 v1, v3, 3, v1")
    ACC = 48; AF = 64; BF = 96; D = 6
    def chain(a_addr, a_s, a_q, swap):
        def rd(s):
            a = AF + 4 * (s % 8); b = BF + 4 * (s % 8)
            e(f"ds_read_b64_tr_b16 v[{a}:{a+1}], v{a_addr} offset:{s*a_s}")
            e(f"ds_read_b64_tr_b16 v[{a+2}:{a+3}], v{a_addr} offset:{s*a_s+a_q}")
            e(f"ds_read_b128 v[{b}:{b+3}], v12 offset:{s*1056}")
        DD = 5
        for s in range(DD): rd(s)
        for s in range(32):
            rem = min(31, s + DD - 1) - s
            e(f"s_waitcnt lgkmcnt({3*rem})")
            a = AF + 4 * (s % 8); b = BF + 4 * (s % 8)
            x, y = (b, a) if swap else (a, b)
            c = "0" if s == 0 else f"v[{ACC}:{ACC+15}]"
            e(f"v_mfma_f32_32x32x16_bf16 v[{ACC}:{ACC+15}], v[{x}:{x+3}], v[{y}:{y+3}], {c}")
            if s + DD < 32: rd(s + DD)
    chain(1, 2048, 512, False)
    e("s_lshl_b32 s37, s14, 1")
    e("s_add_u32 s37, s37, s18")
    e("s_lshl_b32 s37, s37, 15")
    e("s_lshl_b32 s38, s15, 12")
    e("s_add_u32 s37, s37, s38")
    e("s_lshl_b32 s38, s19, 11")
    e("s_add_u32 s37, s37, s38")
    e(f"s_add_u32 s37, s37, {hx(WS_QF)}")
    e(f"s_mov_b32 s38, {hx(f32bits(QSCALE))}")
    e(f"s_mov_b32 s39, s38")
    e("s_nop 3")
    for r in range(0, 16, 2):
        e(f"v_pk_mul_f32 v[{ACC+r}:{ACC+r+1}], v[{ACC+r}:{ACC+r+1}], s[38:39]")
    for r in range(8):
        e(f"v_cvt_pk_bf16_f32 v{16+r}, v{ACC+2*r}, v{ACC+2*r+1}")
    e("buffer_store_dwordx4 v[16:19], v8, s[32:35], s37 offen")
    e("buffer_store_dwordx4 v[20:23], v8, s[32:35], s37 offen offset:1024")
    e("s_endpgm")
    k.label(L_kv)
    L_z = k.newlabel("zf")
    e("s_cmp_lg_u32 s16, 4")
    e(f"s_cbranch_scc1 {L_z}")
    e("s_cmp_ge_u32 s15, 4")
    e(f"s_cbranch_scc1 {L_end}")
    e("s_and_b32 s18, s15, 1")
    e("s_mul_i32 s19, s18, 33792")
    e(f"s_add_u32 s19, s19, {K1_XN}")
    e("v_add_u32 v12, s19, v12")
    e("v_lshlrev_b32 v1, 5, v15")
    e("v_lshl_add_u32 v1, v14, 3, v1")
    e(f"v_add_u32 v1, {K1_WKV}, v1")
    e("s_lshl_b32 s37, s14, 1")
    e("s_add_u32 s37, s37, s18")
    e("s_lshr_b32 s38, s37, 3")
    e("s_lshl_b32 s38, s38, 14")
    e("s_and_b32 s37, s37, 7")
    e("s_lshl_b32 s37, s37, 10")
    e("s_add_u32 s37, s37, s38")
    e(f"s_add_u32 s37, s37, {hx(WS_KV)}")
    L_v = k.newlabel("v")
    e("s_cmp_ge_u32 s15, 2")
    e(f"s_cbranch_scc1 {L_v}")
    chain(1, 512, 128, False)
    e("v_and_b32 v3, 0x33, v2")
    e("v_bfe_u32 v4, v2, 2, 1")
    e("v_lshl_or_b32 v3, v4, 3, v3")
    e("v_bfe_u32 v4, v2, 3, 1")
    e("v_lshl_or_b32 v3, v4, 2, v3")
    e("v_lshlrev_b32 v3, 4, v3")
    e("s_nop 5")
    for r in range(4):
        e(f"v_cvt_pk_bf16_f32 v{16+r}, v{ACC+2*r}, v{ACC+2*r+1}")
    e("buffer_store_dwordx4 v[16:19], v3, s[32:35], s37 offen")
    e("s_endpgm")
    k.label(L_v)
    chain(1, 512, 128, True)
    e("v_and_b32 v3, 15, v2")
    e("v_lshlrev_b32 v3, 4, v3")
    e("v_lshl_add_u32 v3, v11, 8, v3")
    e("v_bfe_u32 v4, v2, 4, 1")
    e("v_lshl_add_u32 v3, v4, 9, v3")
    e("v_cmp_eq_u32 vcc, 1, v4")
    e("s_add_u32 s37, s37, 8192")
    e("s_nop 4")
    for r in range(8):
        e(f"v_cvt_pk_bf16_f32 v{16+r}, v{ACC+2*r}, v{ACC+2*r+1}")
    for r in range(4):
        e(f"v_cndmask_b32 v{16+r}, v{16+r}, v{20+r}, vcc")
    e("buffer_store_dwordx4 v[16:19], v3, s[32:35], s37 offen")
    e("s_endpgm")
    k.label(L_z)
    e("s_cmp_ge_u32 s2, 8")
    e(f"s_cbranch_scc1 {L_end}")
    e("s_lshl_b32 s37, s2, 10")
    e(f"s_add_u32 s37, s37, {hx(WS_FL)}")
    for r in range(4): e(f"v_mov_b32 v{16+r}, 0")
    e("buffer_store_dwordx4 v[16:19], v8, s[32:35], s37 offen sc1")
    e("s_endpgm")
    k.label(L_cp)
    e("s_sub_u32 s18, s16, 6")
    e("s_mul_i32 s19, s18, 33792")
    e("s_mul_i32 s37, s15, 4224")
    e("s_add_u32 s19, s19, s37")
    e(f"s_add_u32 s19, s19, {K1_XN}")
    e("v_add_u32 v12, s19, v12")
    for q in range(4):
        e(f"ds_read_b128 v[{16+4*q}:{19+4*q}], v12 offset:{q*1056}")
    e("s_lshl_b32 s37, s14, 1")
    e("s_add_u32 s37, s37, s18")
    e("s_lshl_b32 s37, s37, 15")
    e("s_lshl_b32 s38, s15, 12")
    e("s_add_u32 s37, s37, s38")
    if WS_XN: e(f"s_add_u32 s37, s37, {hx(WS_XN)}")
    for q in range(4):
        e(f"s_waitcnt lgkmcnt({3-q})")
        e(f"buffer_store_dwordx4 v[{16+4*q}:{19+4*q}], v8, s[32:35], s37 offen offset:{q*1024}")
    e("s_endpgm")
    k.label(L_end)
    e("s_endpgm")
    prof_finish(k, 0)
    return k

if __name__ == "__main__":
    k = gen_k1()
    for x in k.check_hazards(): print(x)
    for x in k.check_waits(): print(x)
    print(k.max_regs(), len(k.lines))
```

```python
from common import *
import os

K1_WQ = 0
K1_XN = 65536
K1_WKV = 65536 + 2 * 33792
K1_LDS = K1_WKV + 16384

def gen_k1b(name="ln_proj_kernel"):
    k = Kernel(name)
    e = k.e
    PFROWS = int(os.environ.get("PFROWS", "512"))
    L_end = k.newlabel("end")
    e("s_cmp_ge_u32 s2, 256")
    e(f"s_cbranch_scc1 {L_end}")
    prof_begin(k)
    e("s_load_dwordx4 s[4:7], s[0:1], 0")
    e("s_load_dwordx4 s[8:11], s[0:1], 16")
    e("s_load_dwordx2 s[12:13], s[0:1], 88")
    e("s_load_dwordx4 s[40:43], s[0:1], 48")
    e("s_and_b32 s14, s2, 7")
    e("s_lshl_b32 s14, s14, 2")
    e("s_lshr_b32 s15, s2, 6")
    e("s_add_u32 s14, s14, s15")
    e("s_bfe_u32 s15, s2, 0x30003")
    e("v_lshrrev_b32 v1, 6, v0")
    e("v_and_b32 v2, 63, v0")
    e("v_readfirstlane_b32 s16, v1")
    e("v_lshrrev_b32 v3, 3, v2")
    e("v_and_b32 v4, 7, v2")
    e("v_lshlrev_b32 v5, 10, v3")
    e("v_lshl_add_u32 v6, v4, 4, v5")
    e("v_lshlrev_b32 v7, 1, v3")
    e("v_and_b32 v7, 4, v7")
    e("v_xor_b32 v7, v7, v4")
    e("v_lshl_add_u32 v7, v7, 4, v5")
    for n in range(1, 4): e(f"v_add_u32 v{124+n}, {n*7168}, v7")
    e("v_lshlrev_b32 v8, 4, v2")
    e("s_lshl_b32 s17, s14, 16")
    e("s_lshl_b32 s18, s16, 13")
    e("s_add_u32 s17, s17, s18")
    e("s_lshl_b32 s18, s16, 16")
    e("s_lshl_b32 s19, s15, 7")
    e("s_add_u32 s18, s18, s19")
    e("s_lshl_b32 s19, s16, 13")
    e("s_waitcnt lgkmcnt(0)")
    srd(k, 20, 4, 2048 * 1024)
    X = 16
    for m in range(8):
        e(f"buffer_load_dwordx4 v[{X+4*m}:{X+4*m+3}], v6, s[20:23], s17 offen offset:{m*128}")
    srd(k, 24, 6, 512 * 1024)
    e("s_cmp_ge_u32 s15, 4")
    e("s_cselect_b32 s28, s10, s8")
    e("s_cselect_b32 s29, s11, s9")
    e("s_mov_b32 s30, 16384")
    e("s_mov_b32 s31, 0x20000")
    srd(k, 32, 12, WS_SIZE)
    e("s_barrier")
    vq = [7, 125, 126, 127]
    for g in range(2):
        e("s_mov_b32 m0, s19")
        e("s_add_u32 s19, s19, 4096")
        for n in range(4):
            e(f"buffer_load_dwordx4 v{vq[n]}, s[24:27], s18 offen offset:{n*1024} lds")
        e("s_add_u32 s18, s18, 32768")
    e("s_lshl_b32 s18, s16, 11")
    e(f"s_add_u32 s19, s18, {K1_WKV}")
    e("s_mov_b32 m0, s19")
    e("s_nop 0")
    e("buffer_load_dwordx4 v8, s[28:31], s18 offen lds")
    e("buffer_load_dwordx4 v8, s[28:31], s18 offen offset:1024 lds")
    e("s_bitcmp1_b32 s16, 0")
    e("s_cselect_b32 s44, s42, s40")
    e("s_cselect_b32 s45, s43, s41")
    e("s_cmp_ge_u32 s16, 4")
    e(f"s_cselect_b32 s46, {PFROWS*3584}, 0")
    e("s_mov_b32 s47, 0x20000")
    e("v_min_u32 v10, 6, v4")
    e("v_mul_u32_u24 v11, 3584, v3")
    e("v_lshl_add_u32 v10, v10, 7, v11")
    e("s_lshr_b32 s18, s2, 3")
    e("s_lshl_b32 s18, s18, 1")
    e("s_bfe_u32 s19, s16, 0x10001")
    e("s_add_u32 s18, s18, s19")
    e(f"s_mul_i32 s18, s18, {8*3584}")
    e("s_bfe_u32 s19, s2, 0x20001")
    e("s_mul_i32 s19, s19, 896")
    e("s_add_u32 s48, s18, s19")
    e("s_lshr_b32 s18, s16, 2")
    e("s_mul_i32 s18, s18, 33792")
    e("s_and_b32 s19, s16, 3")
    e("s_lshl_b32 s19, s19, 7")
    e("s_add_u32 s18, s18, s19")
    e(f"s_add_u32 s18, s18, {K1_XN}")
    e("v_mul_u32_u24 v9, 528, v4")
    e("v_lshl_add_u32 v9, v3, 4, v9")
    e("v_add_u32 v9, s18, v9")
    e("s_mov_b32 s36, 0xffff0000")
    F = 48
    stamp(k, 1)
    A = 112
    for m in range(8):
        e(f"s_waitcnt vmcnt({10 + 7 - m})")
        if m == 7:
            stamp(k, 2)
            e("buffer_load_dword v124, v10, s[44:47], s48 offen ; touch")
        for q in range(4):
            r = X + 4 * m + q
            e(f"v_lshlrev_b32 v{F+8*m+2*q}, 16, v{r}")
            e(f"v_and_b32 v{F+8*m+2*q+1}, s36, v{r}")
        if m == 1:
            for a in range(4):
                e(f"v_pk_add_f32 v[{A+2*a}:{A+2*a+1}], v[{F+2*a}:{F+2*a+1}], v[{F+8+2*a}:{F+8+2*a+1}]")
        elif m > 1:
            for a in range(4):
                e(f"v_pk_add_f32 v[{A+2*a}:{A+2*a+1}], v[{A+2*a}:{A+2*a+1}], v[{F+8*m+2*a}:{F+8*m+2*a+1}]")
    def reduce8(A):
        e(f"v_pk_add_f32 v[{A}:{A+1}], v[{A}:{A+1}], v[{A+2}:{A+3}]")
        e(f"v_pk_add_f32 v[{A+4}:{A+5}], v[{A+4}:{A+5}], v[{A+6}:{A+7}]")
        e(f"v_pk_add_f32 v[{A}:{A+1}], v[{A}:{A+1}], v[{A+4}:{A+5}]")
        e(f"v_add_f32 v{A}, v{A}, v{A+1}")
        for d in ("quad_perm:[1,0,3,2]", "quad_perm:[2,3,0,1]", "row_half_mirror"):
            e("s_nop 1")
            e(f"v_add_f32_dpp v{A}, v{A}, v{A} {d} row_mask:0xf bank_mask:0xf")
    reduce8(A)
    e(f"v_mul_f32 v120, {hx(f32bits(-1.0/512))}, v{A}")
    e("v_cvt_pk_bf16_f32 v122, v120, v120")
    e("v_and_b32 v122, s36, v122")
    e("v_mov_b32 v123, v122")
    e("v_sub_f32 v121, v122, v120")
    for m in range(8):
        for a in range(4):
            p = F + 8 * m + 2 * a
            e(f"v_pk_add_f32 v[{p}:{p+1}], v[{p}:{p+1}], v[122:123]")
        for a in range(4):
            p = F + 8 * m + 2 * a
            if m == 0: e(f"v_pk_mul_f32 v[{A+2*a}:{A+2*a+1}], v[{p}:{p+1}], v[{p}:{p+1}]")
            else: e(f"v_pk_fma_f32 v[{A+2*a}:{A+2*a+1}], v[{p}:{p+1}], v[{p}:{p+1}], v[{A+2*a}:{A+2*a+1}]")
    reduce8(A)
    e("v_mul_f32 v121, v121, v121")
    e(f"s_mov_b32 s37, {hx(f32bits(1.0/512))}")
    e(f"v_fma_f32 v{A}, v{A}, s37, -v121")
    e(f"v_max_f32 v{A}, 0, v{A}")
    e(f"v_cvt_pk_bf16_f32 v{A}, v{A}, v{A}")
    e(f"v_lshlrev_b32 v{A}, 16, v{A}")
    e(f"v_add_f32 v{A}, {hx(f32bits(1e-5))}, v{A}")
    e(f"v_cvt_pk_bf16_f32 v{A}, v{A}, v{A}")
    e(f"v_lshlrev_b32 v{A}, 16, v{A}")
    e(f"v_sqrt_f32 v{A}, v{A}")
    e("s_nop 0")
    e(f"v_cvt_pk_bf16_f32 v{A}, v{A}, v{A}")
    e(f"v_lshlrev_b32 v{A}, 16, v{A}")
    e(f"v_rcp_f32 v120, v{A}")
    EXACT = os.environ.get("EXACT", "1") == "1"
    for m in range(8):
        if EXACT:
            for a in range(4):
                p = F + 8 * m + 2 * a
                e(f"v_cvt_pk_bf16_f32 v{X+4*m+a}, v{p}, v{p+1}")
            for a in range(4):
                p = F + 8 * m + 2 * a
                e(f"v_lshlrev_b32 v{p}, 16, v{X+4*m+a}")
                e(f"v_and_b32 v{p+1}, s36, v{X+4*m+a}")
        if m == 0:
            e("s_nop 0")
            e("v_mov_b32 v121, v120")
        for a in range(4):
            p = F + 8 * m + 2 * a
            e(f"v_pk_mul_f32 v[{p}:{p+1}], v[{p}:{p+1}], v[120:121]")
        for a in range(4):
            p = F + 8 * m + 2 * a
            e(f"v_cvt_pk_bf16_f32 v{X+4*m+a}, v{p}, v{p+1}")
        e(f"ds_write_b128 v9, v[{X+4*m}:{X+4*m+3}] offset:{m*4224}")
    e("v_and_b32 v10, 31, v2")
    e("v_lshrrev_b32 v11, 5, v2")
    e("v_mul_u32_u24 v12, 528, v11")
    e("v_lshl_add_u32 v12, v10, 4, v12")
    e("v_bfe_u32 v13, v2, 2, 2")
    e("v_and_b32 v14, 3, v2")
    stamp(k, 3)
    e("s_waitcnt vmcnt(1) lgkmcnt(0)")
    stamp(k, 4)
    e("s_barrier")
    stamp(k, 5)
    L_kv = k.newlabel("kv"); L_cp = k.newlabel("cp")
    e("s_cmp_ge_u32 s16, 4")
    e(f"s_cbranch_scc1 {L_kv}")
    e("v_lshl_add_u32 v15, v11, 3, v13")
    e("s_and_b32 s18, s16, 1")
    e("s_mul_i32 s19, s18, 33792")
    e(f"s_add_u32 s19, s19, {K1_XN}")
    e("v_add_u32 v12, s19, v12")
    e("s_lshr_b32 s19, s16, 1")
    e("s_lshl_b32 s37, s19, 2")
    e("v_bfe_u32 v1, v2, 4, 1")
    e("v_lshlrev_b32 v1, 1, v1")
    e("v_lshrrev_b32 v3, 1, v14")
    e("v_add3_u32 v1, v1, v3, s37")
    e("v_lshlrev_b32 v3, 1, v13")
    e("v_and_b32 v3, 4, v3")
    e("v_xor_b32 v1, v1, v3")
    e("v_lshlrev_b32 v1, 4, v1")
    e("v_lshl_add_u32 v1, v15, 7, v1")
    e("v_and_b32 v3, 1, v14")
    e("v_lshl_add_u32 v1, v3, 3, v1")
    ACC = 48; AF = 64; BF = 96
    def rd(s):
        a = AF + 4 * (s % 7); b = BF + 4 * (s % 7)
        e(f"ds_read_b64_tr_b16 v[{a}:{a+1}], v1 offset:{s*2048}")
        e(f"ds_read_b64_tr_b16 v[{a+2}:{a+3}], v1 offset:{s*2048+512}")
        e(f"ds_read_b128 v[{b}:{b+3}], v12 offset:{s*1056}")
    DD = 5
    for s in range(DD): rd(s)
    for s in range(32):
        rem = min(31, s + DD - 1) - s
        e(f"s_waitcnt lgkmcnt({3*rem})")
        a = AF + 4 * (s % 7); b = BF + 4 * (s % 7)
        c = "0" if s == 0 else f"v[{ACC}:{ACC+15}]"
        e(f"v_mfma_f32_32x32x16_bf16 v[{ACC}:{ACC+15}], v[{a}:{a+3}], v[{b}:{b+3}], {c}")
        if s + DD < 32: rd(s + DD)
    e("s_lshl_b32 s37, s14, 1")
    e("s_add_u32 s37, s37, s18")
    e("s_lshl_b32 s37, s37, 15")
    e("s_lshl_b32 s38, s15, 12")
    e("s_add_u32 s37, s37, s38")
    e("s_lshl_b32 s38, s19, 11")
    e("s_add_u32 s37, s37, s38")
    e(f"s_add_u32 s37, s37, {hx(WS_QF)}")
    e(f"s_mov_b32 s38, {hx(f32bits(QSCALE))}")
    e(f"s_mov_b32 s39, s38")
    e("s_nop 3")
    for r in range(0, 16, 2):
        e(f"v_pk_mul_f32 v[{ACC+r}:{ACC+r+1}], v[{ACC+r}:{ACC+r+1}], s[38:39]")
    for r in range(8):
        e(f"v_cvt_pk_bf16_f32 v{16+r}, v{ACC+2*r}, v{ACC+2*r+1}")
    e("buffer_store_dwordx4 v[16:19], v8, s[32:35], s37 offen")
    e("buffer_store_dwordx4 v[20:23], v8, s[32:35], s37 offen offset:1024")
    e("s_endpgm")
    k.label(L_kv)
    L_z = k.newlabel("zf")
    e("s_cmp_ge_u32 s16, 6")
    e(f"s_cbranch_scc1 {L_cp}")
    e("s_cmp_lg_u32 s16, 4")
    e(f"s_cbranch_scc1 {L_z}")
    e("v_lshrrev_b32 v9, 4, v2")
    e("v_lshl_add_u32 v10, v9, 3, v13")
    e("v_lshlrev_b32 v10, 5, v10")
    e("v_lshl_add_u32 v10, v14, 3, v10")
    e(f"v_add_u32 v10, {K1_WKV}, v10")
    e("s_bfe_u32 s18, s15, 0x10001")
    e("s_and_b32 s19, s15, 1")
    e("s_mul_i32 s37, s18, 33792")
    e("s_lshl_b32 s38, s19, 8")
    e("s_add_u32 s37, s37, s38")
    e(f"s_add_u32 s37, s37, {K1_XN}")
    e("v_and_b32 v15, 15, v2")
    e("v_mul_u32_u24 v11, 528, v9")
    e("v_lshl_add_u32 v11, v15, 4, v11")
    e("v_add_u32 v11, s37, v11")
    W = 48; XX = 16
    def rd2(s):
        w = W + 4 * s; x = XX + 4 * (s % 8)
        e(f"ds_read_b64_tr_b16 v[{w}:{w+1}], v10 offset:{s*1024}")
        e(f"ds_read_b64_tr_b16 v[{w+2}:{w+3}], v10 offset:{s*1024+128}")
        e(f"ds_read_b128 v[{x}:{x+3}], v11 offset:{s*2112}")
    e("s_lshl_b32 s37, s14, 1")
    e("s_add_u32 s37, s37, s18")
    e("s_lshr_b32 s38, s37, 3")
    e("s_lshl_b32 s38, s38, 14")
    e("s_and_b32 s37, s37, 7")
    e("s_lshl_b32 s37, s37, 10")
    e("s_add_u32 s37, s37, s38")
    e(f"s_add_u32 s37, s37, {hx(WS_KV)}")
    L_v = k.newlabel("v"); L_st = k.newlabel("st")
    e("s_cmp_ge_u32 s15, 4")
    e(f"s_cbranch_scc1 {L_v}")
    def chain(swap):
        for s in range(5): rd2(s)
        for s in range(16):
            rem = min(15, s + 4) - s
            e(f"s_waitcnt lgkmcnt({3*rem})")
            a, b = W + 4 * s, XX + 4 * (s % 8)
            if swap: a, b = b, a
            acc = 112 + 4 * (s % 2)
            c = "0" if s < 2 else f"v[{acc}:{acc+3}]"
            e(f"v_mfma_f32_16x16x32_bf16 v[{acc}:{acc+3}], v[{a}:{a+3}], v[{b}:{b+3}], {c}")
            if s + 5 < 16: rd2(s + 5)
    chain(False)
    e("v_lshlrev_b32 v12, 4, v15")
    e("v_and_b32 v13, 1, v9")
    e("v_lshl_add_u32 v12, v13, 9, v12")
    e("v_lshrrev_b32 v13, 1, v9")
    e("v_lshl_add_u32 v12, v13, 3, v12")
    e("s_lshl_b32 s38, s19, 8")
    e("s_add_u32 s37, s37, s38")
    e(f"s_branch {L_st}")
    k.label(L_v)
    chain(True)
    e("v_lshlrev_b32 v12, 4, v15")
    e("v_lshrrev_b32 v13, 1, v9")
    e("v_lshl_add_u32 v12, v13, 8, v12")
    e("v_and_b32 v13, 1, v9")
    e("v_lshl_add_u32 v12, v13, 3, v12")
    e("s_lshl_b32 s38, s19, 9")
    e("s_add_u32 s37, s37, s38")
    e("s_add_u32 s37, s37, 8192")
    k.label(L_st)
    e("s_nop 0")
    e("v_pk_add_f32 v[112:113], v[112:113], v[116:117]")
    e("v_pk_add_f32 v[114:115], v[114:115], v[118:119]")
    e("v_cvt_pk_bf16_f32 v112, v112, v113")
    e("v_cvt_pk_bf16_f32 v113, v114, v115")
    e("buffer_store_dwordx2 v[112:113], v12, s[32:35], s37 offen")
    e("s_endpgm")
    k.label(L_z)
    e("s_cmp_ge_u32 s2, 8")
    e(f"s_cbranch_scc1 {L_end}")
    e("s_lshl_b32 s37, s2, 10")
    e(f"s_add_u32 s37, s37, {hx(WS_FL)}")
    for r in range(4): e(f"v_mov_b32 v{16+r}, 0")
    e("buffer_store_dwordx4 v[16:19], v8, s[32:35], s37 offen sc1")
    e("s_endpgm")
    k.label(L_cp)
    e("s_sub_u32 s18, s16, 6")
    e("s_mul_i32 s19, s18, 33792")
    e("s_mul_i32 s37, s15, 4224")
    e("s_add_u32 s19, s19, s37")
    e(f"s_add_u32 s19, s19, {K1_XN}")
    e("v_add_u32 v12, s19, v12")
    for q in range(4):
        e(f"ds_read_b128 v[{16+4*q}:{19+4*q}], v12 offset:{q*1056}")
    e("s_lshl_b32 s37, s14, 1")
    e("s_add_u32 s37, s37, s18")
    e("s_lshl_b32 s37, s37, 15")
    e("s_lshl_b32 s38, s15, 12")
    e("s_add_u32 s37, s37, s38")
    if WS_XN: e(f"s_add_u32 s37, s37, {hx(WS_XN)}")
    for q in range(4):
        e(f"s_waitcnt lgkmcnt({3-q})")
        e(f"buffer_store_dwordx4 v[{16+4*q}:{19+4*q}], v8, s[32:35], s37 offen offset:{q*1024}")
    e("s_endpgm")
    k.label(L_end)
    e("s_endpgm")
    prof_finish(k, 0)
    return k

if __name__ == "__main__":
    k = gen_k1b()
    for x in k.check_hazards(): print(x)
    for x in k.check_waits(): print(x)
    print(k.max_regs(), len(k.lines))
```

```python
from common import *
import os

M_W = 0
M_XN = 32768
M_LDS = M_XN + 8 * 1040

def gen_k1min(name="ln_kv_kernel"):
    k = Kernel(name)
    e = k.e
    L_end = k.newlabel("end")
    e("s_cmp_ge_u32 s2, 256")
    e(f"s_cbranch_scc1 {L_end}")
    prof_begin(k)
    e("s_load_dwordx4 s[4:7], s[0:1], 0")
    e("s_load_dwordx4 s[8:11], s[0:1], 16")
    e("s_load_dwordx2 s[12:13], s[0:1], 88")
    e("s_load_dwordx4 s[40:43], s[0:1], 48")
    e("s_and_b32 s14, s2, 7")
    e("s_lshl_b32 s14, s14, 5")
    e("s_lshr_b32 s15, s2, 3")
    e("s_add_u32 s14, s14, s15")
    e("v_lshrrev_b32 v1, 6, v0")
    e("v_and_b32 v2, 63, v0")
    e("v_readfirstlane_b32 s16, v1")
    e("v_lshrrev_b32 v3, 5, v2")
    e("v_and_b32 v4, 31, v2")
    e("v_lshlrev_b32 v5, 10, v3")
    e("v_lshl_add_u32 v5, v4, 4, v5")
    e("v_lshlrev_b32 v8, 4, v2")
    e("s_lshl_b32 s17, s14, 13")
    e("s_lshl_b32 s18, s16, 11")
    e("s_add_u32 s17, s17, s18")
    e("s_waitcnt lgkmcnt(0)")
    stamp(k, 6)
    srd(k, 20, 4, 2048 * 1024)
    e("buffer_load_dwordx4 v[16:19], v5, s[20:23], s17 offen")
    e("buffer_load_dwordx4 v[20:23], v5, s[20:23], s17 offen offset:512")
    srd(k, 32, 12, WS_SIZE)
    L_pf = k.newlabel("pf"); L_ln = k.newlabel("ln")
    e("s_cmp_ge_u32 s16, 2")
    e(f"s_cbranch_scc1 {L_pf}")
    e("s_cmp_eq_u32 s16, 1")
    e("s_cselect_b32 s28, s10, s8")
    e("s_cselect_b32 s29, s11, s9")
    e("s_mov_b32 s30, 16384")
    e("s_mov_b32 s31, 0x20000")
    e("s_lshl_b32 s19, s16, 14")
    e("s_mov_b32 s18, 0")
    for g in range(4):
        e("s_mov_b32 m0, s19")
        e("s_add_u32 s19, s19, 4096")
        for q in range(4):
            e(f"buffer_load_dwordx4 v8, s[28:31], s18 offen offset:{q*1024} lds")
        e("s_add_u32 s18, s18, 4096")
    if os.environ.get("PF", "3") == "3": e("s_barrier")
    stamp(k, 5)
    e("s_waitcnt vmcnt(16)")
    e(f"s_branch {L_ln}")
    k.label(L_pf)
    PF = os.environ.get("PF", "3")
    npf = 0
    def prefetch():
        npf = 0
        srd(k, 24, 6, 512 * 1024)
        e("v_lshlrev_b32 v9, 7, v2")
        e("s_lshr_b32 s18, s2, 3")
        e("s_lshl_b32 s18, s18, 1")
        e("s_add_u32 s18, s18, s16")
        e("s_sub_u32 s18, s18, 2")
        e("s_lshl_b32 s19, s18, 13")
        e("buffer_load_dword v30, v9, s[24:27], s19 offen"); npf += 1
        e("s_cmp_eq_u32 s16, 3")
        e("s_cselect_b32 s28, s42, s40")
        e("s_cselect_b32 s29, s43, s41")
        e(f"s_mov_b32 s30, {512*3584}")
        e("s_mov_b32 s31, 0x20000")
        e("v_lshrrev_b32 v10, 3, v2")
        e("v_and_b32 v11, 7, v2")
        e("v_min_u32 v11, 6, v11")
        e("v_mul_u32_u24 v10, 3584, v10")
        e("v_lshl_add_u32 v10, v11, 7, v10")
        e("s_lshr_b32 s18, s2, 3")
        e(f"s_mul_i32 s18, s18, {16*3584}")
        e("s_bfe_u32 s19, s2, 0x20001")
        e("s_mul_i32 s19, s19, 896")
        e("s_add_u32 s18, s18, s19")
        e("buffer_load_dword v31, v10, s[28:31], s18 offen"); npf += 1
        e(f"s_add_u32 s18, s18, {8*3584}")
        e("buffer_load_dword v32, v10, s[28:31], s18 offen"); npf += 1
        return npf
    if PF == "3": e("s_barrier")
    if PF in ("1", "3"): npf = prefetch()
    L_nz = k.newlabel("nz")
    e("s_cmp_ge_u32 s2, 8")
    e(f"s_cbranch_scc1 {L_nz}")
    e("s_cmp_lg_u32 s16, 2")
    e(f"s_cbranch_scc1 {L_nz}")
    e("s_lshl_b32 s37, s2, 10")
    e(f"s_add_u32 s37, s37, {hx(WS_FL)}")
    for r in range(4): e(f"v_mov_b32 v{36+r}, 0")
    e("buffer_store_dwordx4 v[36:39], v8, s[32:35], s37 offen sc1")
    k.label(L_nz)
    e(f"s_waitcnt vmcnt({npf})")
    k.label(L_ln)
    stamp(k, 1)
    e("s_mov_b32 s36, 0xffff0000")
    F = 40
    for r in range(8):
        e(f"v_lshlrev_b32 v{F+2*r}, 16, v{16+r}")
        e(f"v_and_b32 v{F+2*r+1}, s36, v{16+r}")
    A = 56
    def tree(src_pairs_done):
        e(f"v_pk_add_f32 v[{A}:{A+1}], v[{A}:{A+1}], v[{A+2}:{A+3}]")
        e(f"v_pk_add_f32 v[{A+4}:{A+5}], v[{A+4}:{A+5}], v[{A+6}:{A+7}]")
        e(f"v_pk_add_f32 v[{A}:{A+1}], v[{A}:{A+1}], v[{A+4}:{A+5}]")
        e(f"v_add_f32 v{A}, v{A}, v{A+1}")
        for d in ("quad_perm:[1,0,3,2]", "quad_perm:[2,3,0,1]", "row_half_mirror", "row_mirror"):
            e("s_nop 1")
            e(f"v_add_f32_dpp v{A}, v{A}, v{A} {d} row_mask:0xf bank_mask:0xf")
        e(f"v_mov_b32 v{A+1}, v{A}")
        e("s_nop 1")
        e(f"v_permlane16_swap_b32 v{A}, v{A+1}")
        e("s_nop 1")
        e(f"v_add_f32 v{A}, v{A}, v{A+1}")
    for a in range(4):
        e(f"v_pk_add_f32 v[{A+2*a}:{A+2*a+1}], v[{F+2*a}:{F+2*a+1}], v[{F+8+2*a}:{F+9+2*a}]")
    tree(0)
    e(f"v_mul_f32 v64, {hx(f32bits(-1.0/512))}, v{A}")
    e("v_mov_b32 v65, v64")
    T = 68
    for a in range(8):
        e(f"v_pk_add_f32 v[{T+2*a}:{T+2*a+1}], v[{F+2*a}:{F+2*a+1}], v[64:65]")
    for a in range(4):
        e(f"v_pk_mul_f32 v[{A+2*a}:{A+2*a+1}], v[{T+2*a}:{T+2*a+1}], v[{T+2*a}:{T+2*a+1}]")
    for a in range(4):
        e(f"v_pk_fma_f32 v[{A+2*a}:{A+2*a+1}], v[{T+8+2*a}:{T+9+2*a}], v[{T+8+2*a}:{T+9+2*a}], v[{A+2*a}:{A+2*a+1}]")
    e("v_cvt_pk_bf16_f32 v66, v64, v64")
    e("v_and_b32 v66, s36, v66")
    e("v_mov_b32 v67, v66")
    for a in range(8):
        e(f"v_pk_add_f32 v[{F+2*a}:{F+2*a+1}], v[{F+2*a}:{F+2*a+1}], v[66:67]")
    tree(0)
    for a in range(8):
        e(f"v_cvt_pk_bf16_f32 v{16+a}, v{F+2*a}, v{F+2*a+1}")
    e(f"v_mul_f32 v{A}, {hx(f32bits(1.0/512))}, v{A}")
    e(f"v_cvt_pk_bf16_f32 v{A}, v{A}, v{A}")
    e(f"v_lshlrev_b32 v{A}, 16, v{A}")
    e(f"v_add_f32 v{A}, {hx(f32bits(1e-5))}, v{A}")
    e(f"v_cvt_pk_bf16_f32 v{A}, v{A}, v{A}")
    e(f"v_lshlrev_b32 v{A}, 16, v{A}")
    e(f"v_sqrt_f32 v{A}, v{A}")
    for r in range(8):
        e(f"v_lshlrev_b32 v{F+2*r}, 16, v{16+r}")
        e(f"v_and_b32 v{F+2*r+1}, s36, v{16+r}")
    e(f"v_cvt_pk_bf16_f32 v{A}, v{A}, v{A}")
    e(f"v_lshlrev_b32 v{A}, 16, v{A}")
    e(f"v_rcp_f32 v64, v{A}")
    e("s_mul_i32 s18, s16, 2080")
    e(f"s_add_u32 s18, s18, {M_XN}")
    e("v_mul_u32_u24 v6, 1040, v3")
    e("v_lshl_add_u32 v6, v4, 4, v6")
    e("v_add_u32 v6, s18, v6")
    e("v_mov_b32 v65, v64")
    e("v_lshlrev_b32 v7, 9, v4")
    e("v_lshl_add_u32 v7, v3, 4, v7")
    e("s_lshr_b32 s18, s14, 2")
    e("s_and_b32 s19, s14, 3")
    e("s_lshl_b32 s37, s18, 15")
    e("s_lshl_b32 s38, s19, 7")
    e("s_add_u32 s37, s37, s38")
    e("s_lshl_b32 s38, s16, 5")
    e("s_add_u32 s37, s37, s38")
    if WS_XN: e(f"s_add_u32 s37, s37, {hx(WS_XN)}")
    e("s_add_u32 s38, s37, 16384")
    for a in range(8):
        e(f"v_pk_mul_f32 v[{F+2*a}:{F+2*a+1}], v[{F+2*a}:{F+2*a+1}], v[64:65]")
    for a in range(8):
        e(f"v_cvt_pk_bf16_f32 v{16+a}, v{F+2*a}, v{F+2*a+1}")
    e("ds_write_b128 v6, v[16:19]")
    e("ds_write_b128 v6, v[20:23] offset:512")
    e("buffer_store_dwordx4 v[16:19], v7, s[32:35], s37 offen")
    e("buffer_store_dwordx4 v[20:23], v7, s[32:35], s38 offen")
    stamp(k, 2)
    L_b23 = k.newlabel("b23")
    e("s_cmp_ge_u32 s16, 2")
    e(f"s_cbranch_scc1 {L_b23}")
    e("v_lshrrev_b32 v9, 4, v2")
    e("v_bfe_u32 v10, v2, 2, 2")
    e("v_lshl_add_u32 v10, v9, 3, v10")
    e("v_and_b32 v11, 3, v2")
    e("v_lshlrev_b32 v11, 3, v11")
    e("v_lshl_add_u32 v10, v10, 5, v11")
    e("s_lshl_b32 s39, s16, 14")
    e("v_add_u32 v10, s39, v10")
    e("v_and_b32 v11, 7, v2")
    e("v_mul_u32_u24 v11, 1040, v11")
    e("v_lshl_add_u32 v11, v9, 4, v11")
    e(f"v_add_u32 v11, {M_XN}, v11")
    e("s_waitcnt vmcnt(2)")
    stamp(k, 4)
    W = 64
    for s in range(16):
        for q in range(2):
            e(f"ds_read_b64_tr_b16 v[{W+4*s+2*q}:{W+4*s+2*q+1}], v10 offset:{s*1024+q*128}")
    e("s_waitcnt lgkmcnt(0)")
    e("s_barrier")
    stamp(k, 3)
    X = 128
    for s in range(16):
        e(f"ds_read_b128 v[{X+4*s}:{X+4*s+3}], v11 offset:{s*64}")
    e("s_lshr_b32 s37, s18, 3")
    e("s_lshl_b32 s37, s37, 14")
    e("s_and_b32 s38, s18, 7")
    e("s_lshl_b32 s38, s38, 10")
    e("s_add_u32 s37, s37, s38")
    e(f"s_add_u32 s37, s37, {hx(WS_KV)}")
    L_v = k.newlabel("v")
    e("s_cmp_eq_u32 s16, 1")
    e(f"s_cbranch_scc1 {L_v}")
    def chain(swap):
        for s in range(16):
            e(f"s_waitcnt lgkmcnt({15-s})")
            a, b = W + 4 * s, X + 4 * s
            if swap: a, b = b, a
            acc = 24 + 4 * (s % 2)
            c = "0" if s < 2 else f"v[{acc}:{acc+3}]"
            e(f"v_mfma_f32_16x16x32_bf16 v[{acc}:{acc+3}], v[{a}:{a+3}], v[{b}:{b+3}], {c}")
    chain(False)
    e("v_and_b32 v12, 15, v2")
    e("v_cmp_gt_u32 vcc, 8, v12")
    e("v_lshlrev_b32 v12, 4, v12")
    e("v_and_b32 v13, 1, v9")
    e("v_lshl_add_u32 v12, v13, 9, v12")
    e("v_lshrrev_b32 v13, 1, v9")
    e("v_lshl_add_u32 v12, v13, 3, v12")
    e("s_lshl_b32 s38, s19, 7")
    e("s_add_u32 s37, s37, s38")
    L_st = k.newlabel("st")
    e(f"s_branch {L_st}")
    k.label(L_v)
    chain(True)
    e("v_and_b32 v12, 15, v2")
    e("v_cmp_gt_u32 vcc, 32, v2")
    e("v_lshlrev_b32 v12, 4, v12")
    e("v_lshl_add_u32 v12, v9, 3, v12")
    e("s_lshl_b32 s38, s19, 8")
    e("s_add_u32 s37, s37, s38")
    e("s_add_u32 s37, s37, 8192")
    e("s_nop 1")
    k.label(L_st)
    e("v_pk_add_f32 v[24:25], v[24:25], v[28:29]")
    e("v_pk_add_f32 v[26:27], v[26:27], v[30:31]")
    e("v_cvt_pk_bf16_f32 v24, v24, v25")
    e("v_cvt_pk_bf16_f32 v25, v26, v27")
    e("s_and_saveexec_b64 s[44:45], vcc")
    e("buffer_store_dwordx2 v[24:25], v12, s[32:35], s37 offen")
    e("s_mov_b64 exec, s[44:45]")
    e("s_endpgm")
    k.label(L_b23)
    e("s_waitcnt lgkmcnt(0)")
    e("s_barrier")
    if PF == "2": prefetch()
    e("s_endpgm ")
    k.label(L_end)
    e("s_endpgm")
    prof_finish(k, 0)
    return k

if __name__ == "__main__":
    k = gen_k1min()
    for x in k.check_hazards(): print(x)
    for x in k.check_waits(): print(x)
    print(k.max_regs(), len(k.lines))
```

```python
import sys, re, os
import common
common.PROF = bool(os.environ.get("PROF"))
from common import *
import k1, attn, ffn, k1min, k1b

REF = open("recurrent_scan__grouped_kv_mqa__geglu_ffn__prompt.s.ref").read()
HEAD = "".join(l + "\n" for l in REF.split("\n") if l.startswith(";") and "@launch" not in l and "Override launch" not in l and "grid=ceil" not in l)

def assemble(launches, kernels, path):
    out = HEAD
    for n, g, b, l in launches:
        out += f"; @launch kernel={n} grid=({g},1,1) block=({b},1,1) lds={l}\n"
    out += '.amdgcn_target "amdgcn-amd-amdhsa--gfx950"\n.text\n'
    bad = False
    for k in kernels:
        for x in k.check_hazards()[:8]: print(k.name, x); bad = True
        for x in k.check_waits()[:8]: print(k.name, x); bad = True
        out += kernel_header(k.name) + k.text()
    out += '.section .rodata,"a"\n'
    for k in kernels:
        v, s, a = k.max_regs()
        v = max(v, getattr(k, "min_vgpr", 0))
        out += ".p2align 6\n" + kernel_desc(k.name, v, max(s, 16), a)
    open(path, "w").write(out)
    if bad: print("!!! static check problems")

def v1(path):
    ks = [k1.gen_k1(), attn.gen_attn(), ffn.gen_up(), ffn.gen_down()]
    assemble([("ln_qkv_kernel", 256, 512, k1.K1_LDS), ("attn_kernel", 256, 256, attn.A_LDS),
              ("up_kernel", 256, 256, ffn.U_LDS), ("down_kernel", 256, 256, ffn.D_LDS)], ks, path)

def uponly(path):
    ks = [k1.gen_k1(), ffn.gen_up()]
    assemble([("ln_qkv_kernel", 256, 512, k1.K1_LDS), ("up_kernel", 256, 256, ffn.U_LDS)], ks, path)

def gen_k2a(name="attn_up_kernel", a_first=True, gprio=3, aprio=0):
    k = Kernel(name)
    L_end = k.newlabel("end"); L_b = k.newlabel("roleb")
    k.e("s_cmp_ge_u32 s2, 512")
    k.e(f"s_cbranch_scc1 {L_end}")
    k.e("s_and_b32 s3, s2, 255")
    k.e("s_cmp_ge_u32 s2, 256")
    k.e(f"s_cbranch_scc1 {L_b}")
    def A():
        if aprio: k.e(f"s_setprio {aprio}")
        attn.emit_attn(k, "s3")
    def G():
        if gprio: k.e(f"s_setprio {gprio}")
        ffn.emit_up(k, "s3")
        k.e("s_endpgm")
    (A if a_first else G)()
    k.label(L_b)
    (G if a_first else A)()
    k.label(L_end)
    k.e("s_endpgm")
    prof_finish(k, 1)
    k.min_vgpr = 256
    return k

def v2(path):
    af = os.environ.get("AFIRST", "1") == "1"
    ks = [k1.gen_k1(), gen_k2a(a_first=af, gprio=int(os.environ.get("GPRIO", "3")), aprio=int(os.environ.get("APRIO", "0"))), ffn.gen_down()]
    assemble([("ln_qkv_kernel", 256, 512, k1.K1_LDS), ("attn_up_kernel", 512, 256, max(attn.A_LDS, ffn.U_LDS)),
              ("down_kernel", 256, 256, ffn.D_LDS)], ks, path)

def gen_k2e(name="main_kernel", a_first=True, qproj=False):
    k = Kernel(name)
    L_end = k.newlabel("end"); L_b = k.newlabel("roleb")
    k.e("s_cmp_ge_u32 s2, 512")
    k.e(f"s_cbranch_scc1 {L_end}")
    k.e("s_and_b32 s3, s2, 255")
    k.e("s_cmp_ge_u32 s2, 256")
    k.e(f"s_cbranch_scc1 {L_b}")
    def pubO(k):
        k.e("s_lshl_b32 s30, s14, 7")
        k.e("s_lshl_b32 s31, s15, 4")
        k.e("s_add_u32 s30, s30, s31")
        k.e("s_lshl_b32 s31, s16, 2")
        k.e("s_add_u32 s30, s30, s31")
        k.e(f"s_add_u32 s30, s30, {hx(WS_FLO)}")
        set_flag(k, 20, "s30", 30, 31, 40)
    def waitH(k):
        k.e("v_bfe_u32 v12, v2, 2, 1")
        k.e("v_and_b32 v13, 3, v2")
        k.e("v_lshlrev_b32 v13, 2, v13")
        k.e("v_lshl_add_u32 v12, v12, 6, v13")
        k.e("s_lshl_b32 s52, s14, 7")
        k.e("s_lshl_b32 s53, s16, 4")
        k.e("s_add_u32 s52, s52, s53")
        k.e(f"s_add_u32 s52, s52, {hx(WS_FLH)}")
        poll_flags(k, 12, 28, "s52", 13, sleep=int(os.environ.get('SLEEP', '8')))
    def waitO(k):
        k.e("v_and_b32 v12, 7, v2")
        k.e("v_lshlrev_b32 v12, 2, v12")
        k.e("s_lshl_b32 s52, s14, 7")
        k.e("s_lshl_b32 s53, s16, 5")
        k.e("s_add_u32 s52, s52, s53")
        k.e(f"s_add_u32 s52, s52, {hx(WS_FLO)}")
        poll_flags(k, 12, 28, "s52", 13, sleep=int(os.environ.get('SLEEP', '8')))
    def A():
        k.e(f"s_setprio {os.environ.get('AP0', '1')}")
        attn.emit_attn(k, "s3", publish=pubO, store_mod=" sc1", qproj=qproj, prio_main=int(os.environ.get('AP1', '1')), touch=os.environ.get('TOUCH', '1') == '1')
    def G():
        k.e(f"s_setprio {os.environ.get('GP0', '3')}")
        ffn.emit_up(k, "s3", store_mod=" sc1", prio=(int(os.environ.get('GP1', '0')), int(os.environ.get('GP2', '3'))))
        k.e("s_lshl_b32 s44, s14, 2")
        k.e("s_add_u32 s44, s44, s16")
        k.e("s_lshl_b32 s44, s44, 6")
        k.e("s_lshl_b32 s45, s15, 2")
        k.e("s_add_u32 s44, s44, s45")
        k.e(f"s_add_u32 s44, s44, {hx(WS_FLH)}")
        set_flag(k, 28, "s44", 60, 61, 46)
        k.e("s_barrier")
        ffn.emit_down(k, "s3", wait_h=waitH, wait_o=waitO, load_mod=" sc1", first=False, sb=4, prio=(int(os.environ.get('GP3', '0')), int(os.environ.get('GP4', '3'))))
    (A if a_first else G)()
    k.label(L_b)
    (G if a_first else A)()
    k.label(L_end)
    k.e("s_endpgm")
    prof_finish(k, 1)
    k.min_vgpr = 256
    return k

def v3(path):
    ks = [k1.gen_k1(), gen_k2e()]
    assemble([("ln_qkv_kernel", 256, 512, k1.K1_LDS), ("main_kernel", 512, 256, max(attn.A_LDS, ffn.U_LDS, ffn.D_LDS))], ks, path)

def v4(path):
    ks = [k1min.gen_k1min(), gen_k2e(qproj=True)]
    assemble([("ln_kv_kernel", 256, 256, k1min.M_LDS), ("main_kernel", 512, 256, 81920)], ks, path)

def v5(path):
    ks = [k1b.gen_k1b(), gen_k2e(qproj=False)]
    assemble([("ln_proj_kernel", 256, 512, k1b.K1_LDS), ("main_kernel", 512, 256, 81920)], ks, path)

if __name__ == "__main__":
    which = sys.argv[1] if len(sys.argv) > 1 else "v1"
    path = sys.argv[2] if len(sys.argv) > 2 else "recurrent_scan__grouped_kv_mqa__geglu_ffn__prompt.s"
    globals()[which](path)
```

```python
from asmlib import *
import math, struct

WS_XN = 0x000000
WS_QF = 0x200000
WS_KV = 0x400000
WS_HF = 0x500000
WS_OF = 0xC00000
WS_FL = 0xE00000
WS_FLH = WS_FL
WS_FLO = WS_FL + 4096
WS_SIZE = 0x1000000

def f32bits(x): return struct.unpack("<I", struct.pack("<f", x))[0]
def hx(x): return "0x%x" % (x & 0xffffffff)
QSCALE = 0.25 * math.log2(math.e)

def srd(k, d, base, size):
    if d != base:
        k.e(f"s_mov_b32 s{d}, s{base}")
        k.e(f"s_mov_b32 s{d+1}, s{base+1}")
    k.e(f"s_mov_b32 s{d+2}, {hx(size)}")
    k.e(f"s_mov_b32 s{d+3}, 0x20000")

def kernel_header(name):
    return f""".globl {name}
.p2align 8
.type {name},@function
{name}:
"""

def kernel_desc(name, vgpr, sgpr, agpr=0):
    accum = (vgpr + 3) // 4 * 4
    nfv = accum + agpr if agpr else vgpr
    return f""".amdhsa_kernel {name}
  .amdhsa_next_free_vgpr {nfv}
  .amdhsa_next_free_sgpr {sgpr}
  .amdhsa_accum_offset {accum}
  .amdhsa_group_segment_fixed_size 0
  .amdhsa_kernarg_size 96
  .amdhsa_user_sgpr_count 2
  .amdhsa_user_sgpr_kernarg_segment_ptr 1
  .amdhsa_system_sgpr_workgroup_id_x 1
.end_amdhsa_kernel
"""

PROF = False
WS_PROF = 0x2000000
NST = 12
def stamp(k, idx):
    if PROF:
        k.e(f"s_memrealtime s[{64+2*idx}:{65+2*idx}]")
        k.e("s_waitcnt lgkmcnt(0)")
def prof_begin(k):
    if PROF:
        for i in range(1, NST): k.e(f"s_mov_b32 s{64+2*i}, 0")
        k.e("s_memrealtime s[64:65]")
        k.e("s_memtime s[88:89]")
def prof_finish(k, slot):
    if not PROF: return
    lab = k.newlabel("prof")
    idxs = [i for i, l in enumerate(k.lines) if l.strip() == "s_endpgm"]
    for i in idxs[:-1]: k.lines[i] = f"  s_branch {lab}"
    k.label(lab)
    e = k.e
    e("s_waitcnt vmcnt(0) lgkmcnt(0)")
    e("s_memtime s[90:91]")
    e("s_memrealtime s[92:93]")
    e("s_getreg_b32 s94, hwreg(HW_REG_XCC_ID)")
    e("s_load_dwordx2 s[96:97], s[0:1], 88")
    e("v_lshrrev_b32 v1, 6, v0")
    e("s_lshl_b32 s95, s2, 9")
    e(f"s_add_u32 s95, s95, {hx(WS_PROF + slot * 0x80000)}")
    e("v_lshlrev_b32 v1, 6, v1")
    e("v_add_u32 v1, s95, v1")
    e("s_waitcnt lgkmcnt(0)")
    for i in range(NST): e(f"v_mov_b32 v{4+i}, s{64+2*i}")
    e("s_sub_u32 s90, s90, s88")
    e("v_mov_b32 v16, s92"); e("v_mov_b32 v17, s90"); e("v_mov_b32 v18, s94"); e("v_mov_b32 v19, 0")
    e("v_and_b32 v2, 63, v0")
    e("v_cmp_eq_u32 vcc, 0, v2")
    e("s_and_saveexec_b64 s[98:99], vcc")
    for q in range(4): e(f"global_store_dwordx4 v1, v[{4+4*q}:{7+4*q}], s[96:97] offset:{16*q}")
    e("s_endpgm")

def poll_flags(k, vaddr, srd_, soff, vtmp, scnt="s60", sleep=2):
    L = k.newlabel("poll"); Ld = k.newlabel("polld")
    k.e(f"s_mov_b32 {scnt}, 0x40000")
    k.label(L)
    k.e(f"buffer_load_dword v{vtmp}, v{vaddr}, s[{srd_}:{srd_+3}], {soff} offen sc1")
    k.e("s_waitcnt vmcnt(0)")
    k.e(f"v_cmp_ne_u32 vcc, 0, v{vtmp}")
    k.e("s_cmp_eq_u64 vcc, -1")
    k.e(f"s_cbranch_scc1 {Ld}")
    k.e(f"s_sleep {sleep}")
    k.e(f"s_sub_u32 {scnt}, {scnt}, 1")
    k.e(f"s_cmp_lg_u32 {scnt}, 0")
    k.e(f"s_cbranch_scc1 {L}")
    k.label(Ld)

def set_flag(k, srd_, soff, vt0, vt1, ssave):
    k.e(f"v_mov_b32 v{vt0}, 0")
    k.e(f"v_mov_b32 v{vt1}, 1")
    k.e("s_waitcnt vmcnt(0)")
    k.e(f"s_mov_b64 s[{ssave}:{ssave+1}], exec")
    k.e("s_mov_b64 exec, 1")
    k.e(f"buffer_store_dword v{vt1}, v{vt0}, s[{srd_}:{srd_+3}], {soff} offen sc1")
    k.e(f"s_mov_b64 exec, s[{ssave}:{ssave+1}]")
```

```python
from common import *
import os
ENV = lambda n, d: os.environ.get(n, d)

FL = 128
FX = WS_FL
FKV = WS_FL + 0x10000
FH = WS_FL + 0x20000
FO = WS_FL + 0x40000
EPOCH = WS_FL + 0x60000
WS_ST = WS_FL + 0x80000
TAG = 58

class Q:
    def __init__(self): self.q = []
    def push(self, tag): self.q.append(tag)
    def need(self, tags):
        idx = [i for i, t in enumerate(self.q) if t in tags]
        if not idx: return None
        n = len(self.q) - 1 - max(idx)
        self.q = self.q[max(idx) + 1:]
        return n

def load_epoch(k):
    k.e(f"s_add_u32 s56, s12, {hx(EPOCH)}")
    k.e("s_addc_u32 s57, s13, 0")
    k.e("s_load_dwordx2 s[56:57], s[56:57], 0")
def make_tag(k):
    k.e(f"s_mul_i32 s{TAG}, s56, 1664525")
    k.e(f"s_add_u32 s{TAG}, s{TAG}, 1013904223")
    k.e(f"s_mul_i32 s{TAG+1}, s57, 22695477")
    k.e(f"s_add_u32 s{TAG+1}, s{TAG+1}, 0x3c6ef35f")

def poll(k, vaddr, srd_, soff, vtmp, nload=1, sleep=None):
    sleep = int(ENV("SLEEP", "4")) if sleep is None else sleep
    L = k.newlabel("poll"); Ld = k.newlabel("polld")
    k.e("s_mov_b32 s60, 0x40000")
    k.label(L)
    if nload == 1: soff = [soff]
    for n in range(nload):
        k.e(f"buffer_load_dwordx2 v[{vtmp+2*n}:{vtmp+2*n+1}], v{vaddr}, s[{srd_}:{srd_+3}], {soff[n]} offen sc1")
    k.e("s_waitcnt vmcnt(0)")
    k.e(f"v_cmp_eq_u64 vcc, s[{TAG}:{TAG+1}], v[{vtmp}:{vtmp+1}]")
    for n in range(1, nload):
        k.e(f"v_cmp_eq_u64 s[62:63], s[{TAG}:{TAG+1}], v[{vtmp+2*n}:{vtmp+2*n+1}]")
        k.e("s_and_b64 vcc, vcc, s[62:63]")
    k.e("s_cmp_eq_u64 vcc, -1")
    k.e(f"s_cbranch_scc1 {Ld}")
    k.e(f"s_sleep {sleep}")
    k.e("s_sub_u32 s60, s60, 1")
    k.e("s_cmp_lg_u32 s60, 0")
    k.e(f"s_cbranch_scc1 {L}")
    k.label(Ld)

def wg_poll(k, wave, *args, **kw):
    L = k.newlabel("np")
    k.e(f"s_cmp_lg_u32 s16, {wave}")
    k.e(f"s_cbranch_scc1 {L}")
    poll(k, *args, **kw)
    k.label(L)
    k.e("s_waitcnt vmcnt(0)")
    k.e("s_barrier")

def set_flag(k, srd_, soff, vt, wait="vmcnt(0)"):
    k.e(f"v_mov_b32 v{vt}, s{TAG}")
    k.e(f"v_mov_b32 v{vt+1}, s{TAG+1}")
    k.e(f"v_lshlrev_b32 v{vt+2}, 3, v2")
    if wait: k.e(f"s_waitcnt {wait}")
    k.e("s_mov_b64 exec, 0xffff")
    k.e(f"buffer_store_dwordx2 v[{vt}:{vt+1}], v{vt+2}, s[{srd_}:{srd_+3}], {soff} offen sc1")
    k.e("s_mov_b64 exec, -1")

def arrive(k, srd_, vt):
    L = k.newlabel("arr")
    k.e("s_cmp_lg_u32 s16, 0")
    k.e(f"s_cbranch_scc1 {L}")
    k.e("s_load_dwordx2 s[4:5], s[0:1], 80")
    k.e(f"v_mov_b32 v{vt}, s{TAG}")
    k.e(f"v_mov_b32 v{vt+1}, s{TAG+1}")
    k.e(f"v_mov_b32 v{vt+2}, 0")
    k.e(f"v_mov_b32 v{vt+3}, 1")
    k.e("s_waitcnt lgkmcnt(0)")
    k.e("s_mov_b32 s6, 256")
    k.e("s_mov_b32 s7, 0x20000")
    k.e("s_mov_b64 exec, 1")
    k.e(f"buffer_atomic_add v{vt+3}, v{vt+2}, s[4:7], 0 offen sc0 sc1")
    k.e("s_waitcnt vmcnt(0)")
    k.e(f"v_readfirstlane_b32 s61, v{vt+3}")
    k.e("s_mov_b64 exec, -1")
    k.e("s_cmp_lg_u32 s61, 511")
    k.e(f"s_cbranch_scc1 {L}")
    k.e("s_mov_b64 exec, 1")
    k.e(f"s_mov_b32 s61, {hx(EPOCH)}")
    k.e(f"buffer_store_dwordx2 v[{vt}:{vt+1}], v{vt+2}, s[{srd_}:{srd_+3}], s61 offen sc1")
    k.e("s_mov_b64 exec, -1")
    k.label(L)

A_ONES = 65536

def emit_A(k):
    e = k.e
    prof_begin(k)
    e("s_load_dwordx4 s[4:7], s[0:1], 0")
    e("s_load_dwordx4 s[8:11], s[0:1], 16")
    e("s_load_dwordx2 s[12:13], s[0:1], 88")
    e("s_load_dwordx2 s[50:51], s[0:1], 64")
    e("s_load_dwordx2 s[52:53], s[0:1], 32")
    e("s_and_b32 s14, s3, 7")
    e("s_lshl_b32 s14, s14, 2")
    e("s_lshr_b32 s15, s3, 6")
    e("s_add_u32 s14, s14, s15")
    e("s_bfe_u32 s15, s3, 0x30003")
    e("s_lshl_b32 s33, s14, 3")
    e("s_add_u32 s33, s33, s15")
    e("v_lshrrev_b32 v1, 6, v0")
    e("v_and_b32 v2, 63, v0")
    e("v_readfirstlane_b32 s16, v1")
    e("v_lshrrev_b32 v3, 5, v2")
    e("v_and_b32 v4, 31, v2")
    e("v_lshlrev_b32 v5, 10, v3")
    e("v_lshl_add_u32 v5, v4, 4, v5")
    e("v_lshlrev_b32 v12, 4, v2")
    e("s_lshl_b32 s17, s33, 13")
    e("s_lshl_b32 s18, s16, 11")
    e("s_add_u32 s17, s17, s18")
    e("s_lshl_b32 s37, s16, 14")
    e("s_add_u32 s37, s37, 16384")
    e("s_waitcnt lgkmcnt(0)")
    srd(k, 28, 4, 2048 * 1024)
    e("buffer_load_dwordx4 v[16:19], v5, s[28:31], s17 offen")
    e("buffer_load_dwordx4 v[20:23], v5, s[28:31], s17 offen offset:512")
    load_epoch(k)
    srd(k, 20, 12, WS_SIZE)
    e("v_lshrrev_b32 v8, 3, v2")
    e("v_and_b32 v9, 7, v2")
    e("v_lshlrev_b32 v10, 1, v8")
    e("v_and_b32 v10, 4, v10")
    e("v_xor_b32 v10, v10, v9")
    e("v_lshlrev_b32 v10, 4, v10")
    e("v_lshl_add_u32 v120, v8, 10, v10")
    for n in range(1, 4): e(f"v_add_u32 v{120+n}, {n*7168}, v120")
    e("s_lshl_b32 s34, s16, 17")
    e("s_lshl_b32 s35, s15, 7")
    e("s_add_u32 s34, s34, s35")
    e("s_mov_b32 s4, s6")
    e("s_mov_b32 s5, s7")
    e(f"s_mov_b32 s6, {512*1024}")
    e("s_mov_b32 s7, 0x20000")
    e("s_lshr_b32 s18, s33, 2")
    e("s_and_b32 s19, s33, 3")
    def wq_dma():
        e("s_mov_b32 s40, s37")
        for g in range(4):
            e("s_mov_b32 m0, s40")
            e("s_add_u32 s40, s40, 4096")
            for n in range(4):
                e(f"buffer_load_dwordx4 v{120+n}, s[4:7], s34 offen offset:{n*1024} lds")
            e("s_add_u32 s34, s34, 32768")
    L_ln = k.newlabel("ln"); L_w23 = k.newlabel("w23")
    e("s_cmp_ge_u32 s16, 2")
    e(f"s_cbranch_scc1 {L_w23}")
    e("s_cmp_eq_u32 s16, 1")
    e("s_cselect_b32 s28, s10, s8")
    e("s_cselect_b32 s29, s11, s9")
    e("s_mov_b32 s30, 16384")
    e("s_mov_b32 s19, s37")
    e("s_mov_b32 s18, 0")
    for g in range(4):
        e("s_mov_b32 m0, s19")
        e("s_add_u32 s19, s19, 4096")
        for q in range(4):
            e(f"buffer_load_dwordx4 v12, s[28:31], s18 offen offset:{q*1024} lds")
        e("s_add_u32 s18, s18, 4096")
    e("s_waitcnt vmcnt(16)")
    e(f"s_branch {L_ln}")
    k.label(L_w23)
    e("s_waitcnt vmcnt(0)")
    k.label(L_ln)
    stamp(k, 1)
    e("s_mov_b32 s36, 0xffff0000")
    F = 40; A = 56; T = 68
    for r in range(8):
        e(f"v_lshlrev_b32 v{F+2*r}, 16, v{16+r}")
        e(f"v_and_b32 v{F+2*r+1}, s36, v{16+r}")
    def tree():
        e(f"v_pk_add_f32 v[{A}:{A+1}], v[{A}:{A+1}], v[{A+2}:{A+3}]")
        e(f"v_pk_add_f32 v[{A+4}:{A+5}], v[{A+4}:{A+5}], v[{A+6}:{A+7}]")
        e(f"v_pk_add_f32 v[{A}:{A+1}], v[{A}:{A+1}], v[{A+4}:{A+5}]")
        e(f"v_add_f32 v{A}, v{A}, v{A+1}")
        for d in ("quad_perm:[1,0,3,2]", "quad_perm:[2,3,0,1]", "row_half_mirror", "row_mirror"):
            e("s_nop 1")
            e(f"v_add_f32_dpp v{A}, v{A}, v{A} {d} row_mask:0xf bank_mask:0xf")
        e(f"v_mov_b32 v{A+1}, v{A}")
        e("s_nop 1")
        e(f"v_permlane16_swap_b32 v{A}, v{A+1}")
        e("s_nop 1")
        e(f"v_add_f32 v{A}, v{A}, v{A+1}")
    for a in range(4):
        e(f"v_pk_add_f32 v[{A+2*a}:{A+2*a+1}], v[{F+2*a}:{F+2*a+1}], v[{F+8+2*a}:{F+9+2*a}]")
    tree()
    e(f"v_mul_f32 v64, {hx(f32bits(-1.0/512))}, v{A}")
    e("v_cvt_pk_bf16_f32 v66, v64, v64")
    e("v_and_b32 v66, s36, v66")
    e("v_mov_b32 v67, v66")
    e("v_sub_f32 v65, v66, v64")
    for a in range(8):
        e(f"v_pk_add_f32 v[{F+2*a}:{F+2*a+1}], v[{F+2*a}:{F+2*a+1}], v[66:67]")
    for a in range(4):
        e(f"v_pk_mul_f32 v[{A+2*a}:{A+2*a+1}], v[{F+2*a}:{F+2*a+1}], v[{F+2*a}:{F+2*a+1}]")
    for a in range(4):
        e(f"v_pk_fma_f32 v[{A+2*a}:{A+2*a+1}], v[{F+8+2*a}:{F+9+2*a}], v[{F+8+2*a}:{F+9+2*a}], v[{A+2*a}:{A+2*a+1}]")
    e("v_mul_f32 v65, v65, v65")
    e(f"s_mov_b32 s38, {hx(f32bits(1.0/512))}")
    tree()
    e(f"v_fma_f32 v{A}, v{A}, s38, -v65")
    e(f"v_max_f32 v{A}, 0, v{A}")
    e(f"v_cvt_pk_bf16_f32 v{A}, v{A}, v{A}")
    e(f"v_lshlrev_b32 v{A}, 16, v{A}")
    e(f"v_add_f32 v{A}, {hx(f32bits(1e-5))}, v{A}")
    e(f"v_cvt_pk_bf16_f32 v{A}, v{A}, v{A}")
    e(f"v_lshlrev_b32 v{A}, 16, v{A}")
    e(f"v_sqrt_f32 v{A}, v{A}")
    for a in range(8):
        e(f"v_cvt_pk_bf16_f32 v{16+a}, v{F+2*a}, v{F+2*a+1}")
    e(f"v_cvt_pk_bf16_f32 v{A}, v{A}, v{A}")
    e(f"v_lshlrev_b32 v{A}, 16, v{A}")
    e(f"v_rcp_f32 v64, v{A}")
    for r in range(8):
        e(f"v_lshlrev_b32 v{F+2*r}, 16, v{16+r}")
        e(f"v_and_b32 v{F+2*r+1}, s36, v{16+r}")
    e("s_mul_i32 s18, s16, 2080")
    e("v_mul_u32_u24 v6, 1040, v3")
    e("v_lshl_add_u32 v6, v4, 4, v6")
    e("v_add_u32 v6, s18, v6")
    e("v_mov_b32 v65, v64")
    for a in range(8):
        e(f"v_pk_mul_f32 v[{F+2*a}:{F+2*a+1}], v[{F+2*a}:{F+2*a+1}], v[64:65]")
    for a in range(8):
        e(f"v_cvt_pk_bf16_f32 v{16+a}, v{F+2*a}, v{F+2*a+1}")
    e("ds_write_b128 v6, v[16:19]")
    e("ds_write_b128 v6, v[20:23] offset:512")
    e("s_waitcnt lgkmcnt(0)")
    make_tag(k)
    e("v_mov_b32 v68, v66")
    e(f"v_mov_b32 v69, v{A}")
    e(f"v_mov_b32 v70, s{TAG}")
    e(f"v_mov_b32 v71, s{TAG+1}")
    e("v_lshlrev_b32 v72, 4, v3")
    e("s_lshr_b32 s38, s17, 6")
    e(f"s_add_u32 s38, s38, {hx(WS_ST)}")
    e("s_mov_b32 exec_lo, 1")
    e("s_mov_b32 exec_hi, 1")
    e("buffer_store_dwordx4 v[68:71], v72, s[20:23], s38 offen sc1")
    e("s_mov_b64 exec, -1")
    e("s_lshr_b32 s18, s33, 2")
    e("s_and_b32 s19, s33, 3")
    L_b23 = k.newlabel("b23"); L_q = k.newlabel("q")
    e("s_cmp_ge_u32 s16, 2")
    e(f"s_cbranch_scc1 {L_b23}")
    e("v_lshrrev_b32 v9, 4, v2")
    e("v_bfe_u32 v10, v2, 2, 2")
    e("v_lshl_add_u32 v10, v9, 3, v10")
    e("v_and_b32 v11, 3, v2")
    e("v_lshlrev_b32 v11, 3, v11")
    e("v_lshl_add_u32 v10, v10, 5, v11")
    e("v_add_u32 v10, s37, v10")
    e("v_and_b32 v11, 7, v2")
    e("v_mul_u32_u24 v11, 1040, v11")
    e("v_lshl_add_u32 v11, v9, 4, v11")
    e("s_waitcnt vmcnt(1)")
    W = 128; X = 192
    for s in range(16):
        for q in range(2):
            e(f"ds_read_b64_tr_b16 v[{W+4*s+2*q}:{W+4*s+2*q+1}], v10 offset:{s*1024+q*128}")
    e("s_waitcnt lgkmcnt(0)")
    e("s_barrier")
    for s in range(16):
        e(f"ds_read_b128 v[{X+4*s}:{X+4*s+3}], v11 offset:{s*64}")
    e("s_lshr_b32 s38, s18, 3")
    e("s_lshl_b32 s38, s38, 14")
    e("s_and_b32 s39, s18, 7")
    e("s_lshl_b32 s39, s39, 10")
    e("s_add_u32 s38, s38, s39")
    e(f"s_add_u32 s38, s38, {hx(WS_KV)}")
    L_v = k.newlabel("v"); L_st = k.newlabel("st")
    e("s_cmp_eq_u32 s16, 1")
    e(f"s_cbranch_scc1 {L_v}")
    def chain(swap):
        for s in range(16):
            e(f"s_waitcnt lgkmcnt({min(14, 15-s)})")
            a, b = W + 4 * s, X + 4 * s
            if swap: a, b = b, a
            acc = 24 + 4 * (s % 2)
            c = "0" if s < 2 else f"v[{acc}:{acc+3}]"
            e(f"v_mfma_f32_16x16x32_bf16 v[{acc}:{acc+3}], v[{a}:{a+3}], v[{b}:{b+3}], {c}")
    chain(False)
    e("v_and_b32 v13, 15, v2")
    e("v_cmp_gt_u32 vcc, 8, v13")
    e("v_lshlrev_b32 v13, 4, v13")
    e("v_and_b32 v14, 1, v9")
    e("v_lshl_add_u32 v13, v14, 9, v13")
    e("v_lshrrev_b32 v14, 1, v9")
    e("v_lshl_add_u32 v13, v14, 3, v13")
    e("s_lshl_b32 s39, s19, 7")
    e("s_add_u32 s38, s38, s39")
    e(f"s_branch {L_st}")
    k.label(L_v)
    chain(True)
    e("v_and_b32 v13, 15, v2")
    e("v_cmp_gt_u32 vcc, 32, v2")
    e("v_lshlrev_b32 v13, 4, v13")
    e("v_lshl_add_u32 v13, v9, 3, v13")
    e("s_lshl_b32 s39, s19, 8")
    e("s_add_u32 s38, s38, s39")
    e("s_add_u32 s38, s38, 8192")
    e("s_nop 1")
    k.label(L_st)
    e("s_barrier")
    e("v_pk_add_f32 v[24:25], v[24:25], v[28:29]")
    e("v_pk_add_f32 v[26:27], v[26:27], v[30:31]")
    e("v_cvt_pk_bf16_f32 v24, v24, v25")
    e("v_cvt_pk_bf16_f32 v25, v26, v27")
    e("s_mov_b64 exec, vcc")
    e("buffer_store_dwordx2 v[24:25], v13, s[20:23], s38 offen sc1")
    e("s_mov_b64 exec, -1")
    e("s_lshl_b32 s38, s33, 7")
    e(f"s_add_u32 s38, s38, {hx(FKV)}")
    e("s_waitcnt vmcnt(0)")
    e("s_barrier")
    e("s_cmp_lg_u32 s16, 0")
    e(f"s_cbranch_scc1 {L_q}")
    set_flag(k, 20, "s38", 26, wait=None)
    e(f"s_branch {L_q}")
    k.label(L_b23)
    e("v_mul_u32_u24 v10, 1040, v9")
    e("v_lshl_add_u32 v10, v8, 4, v10")
    e("s_sub_u32 s39, s16, 2")
    e("s_lshl_b32 s38, s39, 9")
    e("v_add_u32 v10, s38, v10")
    e("v_lshlrev_b32 v11, 4, v9")
    e("v_lshl_add_u32 v11, v8, 9, v11")
    e("s_lshl_b32 s38, s18, 15")
    e("s_lshl_b32 s40, s19, 7")
    e("s_add_u32 s38, s38, s40")
    e("s_lshl_b32 s40, s39, 14")
    e("s_add_u32 s38, s38, s40")
    if WS_XN: e(f"s_add_u32 s38, s38, {hx(WS_XN)}")
    e("s_waitcnt lgkmcnt(0)")
    e("s_barrier")
    stamp(k, 7)
    for n in range(4):
        e(f"ds_read_b128 v[{24+4*n}:{27+4*n}], v10 offset:{n*128}")
    for n in range(4):
        e(f"s_waitcnt lgkmcnt({3-n})")
        e(f"buffer_store_dwordx4 v[{24+4*n}:{27+4*n}], v11, s[20:23], s38 offen sc1")
        if n < 3: e("s_add_u32 s38, s38, 4096")
    stamp(k, 8)
    e("s_barrier")
    e("s_lshl_b32 s38, s33, 8")
    e("s_lshl_b32 s39, s39, 7")
    e("s_add_u32 s38, s38, s39")
    e(f"s_add_u32 s38, s38, {hx(FX)}")
    set_flag(k, 20, "s38", 40)
    e("s_barrier")
    k.label(L_q)
    stamp(k, 2)
    wq_dma()
    e("v_mov_b32 v3, 0xdddd")
    e("s_lshl_b32 s17, s14, 16")
    e("s_lshl_b32 s18, s15, 12")
    e("s_add_u32 s17, s17, s18")
    e("s_lshl_b32 s18, s16, 10")
    e("s_add_u32 s17, s17, s18")
    e("s_lshl_b32 s19, s16, 12")
    e("v_add_u32 v124, 32768, v12")
    e("s_lshl_b32 s38, s14, 16")
    e("s_lshl_b32 s39, s16, 13")
    e("s_add_u32 s38, s38, s39")
    if WS_XN: e(f"s_add_u32 s38, s38, {hx(WS_XN)}")
    e("s_add_u32 s39, s38, 4096")
    e(f"s_add_u32 s24, s12, {hx(WS_KV)}")
    e("s_addc_u32 s25, s13, 0")
    e("s_mov_b32 s26, 0x20000")
    e("s_mov_b32 s27, 0x20000")
    e("v_lshrrev_b32 v8, 5, v2")
    e("v_bfe_u32 v9, v2, 2, 2")
    e("v_lshl_add_u32 v8, v8, 3, v9")
    e("v_lshlrev_b32 v8, 7, v8")
    e("v_and_b32 v10, 1, v2")
    e("v_lshl_add_u32 v8, v10, 3, v8")
    e("v_add_u32 v8, s37, v8")
    e("v_bfe_u32 v10, v2, 4, 1")
    e("v_bfe_u32 v11, v2, 1, 1")
    e("v_lshl_add_u32 v10, v10, 1, v11")
    e("v_lshlrev_b32 v9, 1, v9")
    e("v_and_b32 v9, 4, v9")
    e("v_xor_b32 v10, v10, v9")
    e("v_lshl_add_u32 v125, v10, 4, v8")
    e("v_xor_b32 v10, 4, v10")
    e("v_lshl_add_u32 v126, v10, 4, v8")
    e("v_add_u32 v127, s37, v12")
    e("s_lshl_b32 s40, s16, 11")
    e("s_add_u32 s40, s40, 16384")
    e("v_add_u32 v119, s40, v12")
    e("v_and_b32 v8, 15, v2")
    e("v_lshlrev_b32 v8, 7, v8")
    e("s_lshl_b32 s40, s14, 11")
    e(f"s_add_u32 s40, s40, {hx(FX)}")
    L_p2 = k.newlabel("p2")
    e("s_cmp_lg_u32 s16, 3")
    e(f"s_cbranch_scc1 {L_p2}")
    poll(k, 8, 20, "s40", 10, sleep=int(ENV("SL1", "2")))
    k.label(L_p2)
    if ENV("KVEARLY", "1") == "1":
        e("v_lshlrev_b32 v8, 7, v2")
        for n in range(4): e(f"s_mov_b32 s{40+n}, {hx(FKV + n*8192)}")
        wg_poll(k, 2, 8, 20, ["s40", "s41", "s42", "s43"], 16, nload=4, sleep=int(ENV("SL1", "2")))
    else:
        e("s_waitcnt vmcnt(0)")
        e("s_barrier")
    def dma(soff, m0v):
        e(f"s_mov_b32 m0, {m0v}")
        e("s_nop 0")
        for q in range(4):
            e(f"buffer_load_dwordx4 v12, s[24:27], {soff} offen offset:{q*1024} sc1 lds")
    stamp(k, 4)
    XB = 128; ACC = 192; AF = 48
    for ks in range(8):
        so = "s38" if ks < 4 else "s39"
        e(f"buffer_load_dwordx4 v[{XB+8*ks}:{XB+8*ks+3}], v12, s[20:23], {so} offen offset:{(ks%4)*1024} sc1")
        e(f"buffer_load_dwordx4 v[{XB+8*ks+4}:{XB+8*ks+7}], v124, s[20:23], {so} offen offset:{(ks%4)*1024} sc1")
    KE = 4 if ENV("KVEARLY", "1") == "1" else 0
    if KE: dma("s19", "s19")
    for ks in range(8):
        for nt in range(2):
            a = AF + 8 * ks + 4 * nt
            for q in range(2):
                e(f"ds_read_b64_tr_b16 v[{a+2*q}:{a+2*q+1}], v{125+nt} offset:{ks*2048 + q*512}")
    e("s_waitcnt lgkmcnt(0)")
    for ks in range(8):
        e(f"s_waitcnt vmcnt({2*(7-ks) + KE})")
        for tbh in range(2):
            for nt in range(2):
                c = ACC + 16 * (nt + 2 * tbh); a = AF + 8 * ks + 4 * nt; b = XB + 8 * ks + 4 * tbh
                cs = "0" if ks == 0 else f"v[{c}:{c+15}]"
                e(f"v_mfma_f32_32x32x16_bf16 v[{c}:{c+15}], v[{a}:{a+3}], v[{b}:{b+3}], {cs}")
    stamp(k, 9)
    if ENV("KVEARLY", "1") != "1":
        e("v_lshlrev_b32 v8, 7, v2")
        for n in range(4): e(f"s_mov_b32 s{40+n}, {hx(FKV + n*8192)}")
        wg_poll(k, 2, 8, 20, ["s40", "s41", "s42", "s43"], 16, nload=4, sleep=int(ENV("SL1", "2")))
        dma("s19", "s19")
    stamp(k, 5)
    e("s_nop 7")
    e(f"s_mov_b32 s40, {hx(f32bits(QSCALE))}")
    e("s_mov_b32 s41, s40")
    for t in range(4):
        for qd in range(4):
            r = ACC + 16 * t + 4 * qd
            e(f"ds_write_b128 v127, v[{r}:{r+3}] offset:{(4*t+qd)*1024}")
    e("s_waitcnt lgkmcnt(0)")
    e("s_barrier")
    for tbh in range(2):
        for src in range(4):
            for qq in range(2):
                r = XB + 32 * tbh + 8 * src + 4 * qq
                e(f"ds_read_b128 v[{r}:{r+3}], v119 offset:{src*16384 + tbh*8192 + qq*1024}")
    SA, SB, O0, O1 = 16, 32, 48, 64
    for r in range(16):
        e(f"v_mov_b32 v{O0+r}, 0")
        e(f"v_mov_b32 v{O1+r}, 0")
    e("v_and_b32 v13, 11, v2")
    e("v_cmp_eq_u32 vcc, 0, v13")
    e("v_mov_b32 v13, 0x3f803f80")
    e("s_lshl_b32 s18, s16, 11")
    e(f"s_add_u32 s18, s18, {A_ONES}")
    for r in range(4): e(f"v_cndmask_b32 v{16+r}, 0, v13, vcc")
    e("v_add_u32 v15, s18, v12")
    e("s_waitcnt lgkmcnt(0)")
    e("s_barrier")
    e("ds_write_b128 v15, v[16:19]")
    e("ds_write_b128 v15, v[16:19] offset:1024")
    e("s_add_u32 s30, s19, 16384")
    dma("s30", "s30")
    e("s_add_u32 s30, s30, 16384")
    dma("s30", "s30")
    e("s_add_u32 s30, s30, 16384")
    for tbh in range(2):
        b = XB + 32 * tbh
        for j in range(0, 8, 2):
            e(f"v_pk_add_f32 v[{b+j}:{b+j+1}], v[{b+j}:{b+j+1}], v[{b+8+j}:{b+9+j}]")
            e(f"v_pk_add_f32 v[{b+16+j}:{b+17+j}], v[{b+16+j}:{b+17+j}], v[{b+24+j}:{b+25+j}]")
        for j in range(0, 8, 2):
            e(f"v_pk_add_f32 v[{b+j}:{b+j+1}], v[{b+j}:{b+j+1}], v[{b+16+j}:{b+17+j}]")
        for j in range(0, 8, 2):
            e(f"v_pk_mul_f32 v[{b+j}:{b+j+1}], v[{b+j}:{b+j+1}], s[40:41]")
        for j in range(4):
            e(f"v_cvt_pk_bf16_f32 v{4+4*tbh+j}, v{b+2*j}, v{b+2*j+1}")
    e("v_and_b32 v13, 15, v2")
    e("v_lshlrev_b32 v13, 4, v13")
    e("v_lshrrev_b32 v14, 5, v2")
    e("v_lshl_add_u32 v13, v14, 8, v13")
    e("v_bfe_u32 v14, v2, 4, 1")
    e(f"v_mov_b32 v15, {A_ONES - 8192}")
    e("v_mad_u32_u24 v13, v14, v15, v13")
    e("v_xor_b32 v14, 1, v14")
    KF = [80, 84]; VF = [88, 96]
    vKc, vKn, vVc, vVn = 104, 105, 106, 107
    e(f"v_mov_b32 v{vKc}, v12")
    e(f"v_add_u32 v{vKn}, 16384, v12")
    e(f"v_mov_b32 v{vVc}, v13")
    e("s_mov_b32 s31, 16384")
    e(f"v_mad_u32_u24 v{vVn}, v14, s31, v13")
    e("s_mov_b32 s49, 57344")
    e("s_lshr_b32 s42, s3, 3")
    e("s_mul_i32 s48, s16, 24576")
    e("s_cmp_eq_u32 s16, 3")
    e("s_cselect_b32 s44, s52, s50")
    e("s_cselect_b32 s45, s53, s51")
    e("s_cselect_b32 s43, 16384, s49")
    e("s_cselect_b32 s48, 0, s48")
    e("s_mul_i32 s42, s42, s43")
    e("s_add_u32 s46, s42, s43")
    e("s_add_u32 s42, s42, s48")
    e("s_add_u32 s43, s42, 24576")
    e("s_min_u32 s46, s46, s43")
    e("s_mov_b32 s47, 0x20000")
    e("v_lshlrev_b32 v108, 7, v2")
    S = [SA, SB]; O = [O0, O1]; Qr = [4, 8]
    def rdK(t):
        a = vKc if t < 8 else vKn
        e(f"ds_read_b128 v[{KF[t%2]}:{KF[t%2]+3}], v{a} offset:{(t%8)*1024}")
    def rdV(t):
        a = vVc if t < 8 else vVn
        for c in range(2):
            e(f"ds_read_b128 v[{VF[t%2]+4*c}:{VF[t%2]+4*c+3}], v{a} offset:{8192+(t%8)*1024+c*512}")
    def ex(b, lo, hi):
        for r in range(lo, hi): e(f"v_exp_f32 v{b+r}, v{b+r}")
    def qk(X, t, q):
        e(f"v_mfma_f32_32x32x16_bf16 v[{X}:{X+15}], v[{KF[t%2]}:{KF[t%2]+3}], v[{Qr[q]}:{Qr[q]+3}], 0")
    e("s_waitcnt vmcnt(8) lgkmcnt(0)")
    e("s_barrier")
    stamp(k, 6)
    rdK(0); rdK(1); rdV(0)
    e("s_waitcnt lgkmcnt(3)")
    qk(SA, 0, 0)
    qk(SB, 0, 1)
    e("s_nop 10")
    ex(SA, 0, 5)
    e("s_mov_b32 s33, 8")
    e(f"s_setprio {ENV('AP1', '1')}")
    L_loop = k.newlabel("aloop")
    k.label(L_loop)
    for t in range(8):
        for q in range(2):
            X, Y = S[q], S[1 - q]
            V0, V1 = VF[t % 2], VF[t % 2] + 4
            ex(X, 5, 7)
            if q == 0:
                e("s_waitcnt lgkmcnt(0)")
                rdV(t + 1)
            else:
                rdK(t + 2)
            ex(X, 7, 10)
            e(f"v_smfmac_f32_32x32x32_bf16 v[{O[q]}:{O[q]+15}], v[{V0}:{V0+3}], v[{X}:{X+7}], v3")
            ex(X, 10, 13)
            if t == 5 and q == 0:
                e("s_waitcnt vmcnt(4)")
                e("s_barrier")
                e("s_and_b32 s34, s30, 0xffff")
                dma("s30", "s34")
                e("s_add_u32 s30, s30, 16384")
                e("buffer_load_dword v109, v108, s[44:47], s42 offen ; touch")
                e("s_add_u32 s42, s42, 8192")
            ex(X, 13, 16)
            ex(Y, 0, 2)
            e(f"v_smfmac_f32_32x32x32_bf16 v[{O[q]}:{O[q]+15}], v[{V1}:{V1+3}], v[{X+8}:{X+15}], v3")
            ex(Y, 2, 5)
            qk(X, t + 1, q)
    e("s_add_u32 s31, s31, 16384")
    e("s_and_b32 s31, s31, 0xffff")
    e(f"v_mov_b32 v{vKc}, v{vKn}")
    e(f"v_mov_b32 v{vVc}, v{vVn}")
    e(f"v_add_u32 v{vKn}, s31, v12")
    e(f"v_mad_u32_u24 v{vVn}, v14, s31, v13")
    e("s_sub_u32 s33, s33, 1")
    e("s_cmp_lg_u32 s33, 0")
    e(f"s_cbranch_scc1 {L_loop}")
    stamp(k, 3)
    e("s_waitcnt lgkmcnt(0)")
    e("s_setprio 3")
    L_fin = k.newlabel("afin"); L_slow = k.newlabel("aslow")
    e(f"s_mov_b32 s36, {hx(f32bits(2.0**-60))}")
    e(f"s_mov_b32 s37, {hx(f32bits(2.0**60))}")
    e(f"s_mov_b32 s38, {hx(f32bits(2.0**120))}")
    for q in range(2):
        o = O[q]
        e(f"v_max3_f32 v{16+q}, abs(v{o}), abs(v{o+1}), abs(v{o+2})")
        e(f"v_max3_f32 v{16+q}, v{16+q}, abs(v{o+3}), abs(v{o+4})")
        e(f"v_max3_f32 v{16+q}, v{16+q}, abs(v{o+5}), abs(v{o+6})")
        e(f"v_max_f32_e64 v{16+q}, v{16+q}, abs(v{o+7})")
    for q in range(2):
        o = O[q]
        e(f"v_pk_add_f32 v[{20+4*q}:{21+4*q}], v[{o}:{o+1}], v[{o+2}:{o+3}]")
        e(f"v_pk_add_f32 v[{22+4*q}:{23+4*q}], v[{o+4}:{o+5}], v[{o+6}:{o+7}]")
    e("v_pk_add_f32 v[20:21], v[20:21], v[22:23]")
    e("v_pk_add_f32 v[24:25], v[24:25], v[26:27]")
    e("v_pk_add_f32 v[20:21], v[20:21], v[24:25]")
    e("v_max_f32 v16, v16, v17")
    e(f"v_min_f32 v18, v{O0+8}, v{O1+8}")
    e(f"v_max_f32 v19, v{O0+8}, v{O1+8}")
    e(f"v_cmp_o_f32 s[46:47], v{O0+8}, v{O1+8}")
    e("v_cmp_ge_f32 s[40:41], v18, s36")
    e("v_cmp_le_f32 s[42:43], v19, s37")
    e("v_cmp_le_f32 s[44:45], v16, s38")
    e("v_cmp_o_f32 vcc, v20, v21")
    e("s_and_b64 s[40:41], s[40:41], s[42:43]")
    e("s_and_b64 s[44:45], s[44:45], s[46:47]")
    e("s_and_b64 s[40:41], s[40:41], vcc")
    e("s_and_b64 s[40:41], s[40:41], s[44:45]")
    e("s_cmp_eq_u64 s[40:41], -1")
    e(f"s_cbranch_scc0 {L_slow}")
    k.label(L_fin)
    e(f"s_add_u32 s28, s17, {hx(WS_OF)}")
    e(f"s_add_u32 s29, s28, 32768")
    e(f"v_rcp_f32 v16, v{O0+8}")
    e(f"v_rcp_f32 v18, v{O1+8}")
    e("s_nop 0")
    e("v_mov_b32 v17, v16")
    e("v_mov_b32 v19, v18")
    for q in range(2):
        o = O[q]
        for r in range(0, 8, 2):
            e(f"v_pk_mul_f32 v[{o+r}:{o+r+1}], v[{o+r}:{o+r+1}], v[{16+2*q}:{17+2*q}]")
        for r in range(4):
            e(f"v_cvt_pk_bf16_f32 v{20+4*q+r}, v{o+2*r}, v{o+2*r+1}")
        e(f"buffer_store_dwordx4 v[{20+4*q}:{23+4*q}], v12, s[20:23], s{28+q} offen sc1")
    e("s_lshl_b32 s30, s14, 12")
    e("s_lshl_b32 s31, s15, 9")
    e("s_add_u32 s30, s30, s31")
    e("s_lshl_b32 s31, s16, 7")
    e("s_add_u32 s30, s30, s31")
    e(f"s_add_u32 s30, s30, {hx(FO)}")
    set_flag(k, 20, "s30", 30)
    stamp(k, 10)
    arrive(k, 20, 34)
    e("s_endpgm")
    k.label(L_slow)
    e("s_waitcnt vmcnt(0)")
    e("v_and_b32 v13, 15, v2")
    e("v_lshlrev_b32 v13, 4, v13")
    e("v_lshrrev_b32 v15, 5, v2")
    e("v_lshl_add_u32 v13, v15, 8, v13")
    e("v_add_u32 v13, 8192, v13")
    e("v_cmp_eq_u32 s[54:55], 0, v14")
    e("v_mov_b32 v108, 0x3f803f80")
    e("v_mov_b32 v110, 0xff800000")
    e("v_mov_b32 v111, 0xff800000")
    for r in range(16):
        e(f"v_mov_b32 v{O0+r}, 0")
        e(f"v_mov_b32 v{O1+r}, 0")
    e("s_mov_b32 s33, 0")
    L_sl = k.newlabel("asl")
    k.label(L_sl)
    e("s_lshr_b32 s34, s33, 3")
    e("s_lshl_b32 s34, s34, 14")
    e("s_and_b32 s35, s33, 7")
    e("s_lshl_b32 s35, s35, 10")
    e("s_add_u32 s34, s34, s35")
    e("buffer_load_dwordx4 v[80:83], v12, s[24:27], s34 offen sc1")
    e("buffer_load_dwordx4 v[88:91], v13, s[24:27], s34 offen sc1")
    e("buffer_load_dwordx4 v[92:95], v13, s[24:27], s34 offen offset:512 sc1")
    e("s_waitcnt vmcnt(0)")
    for r in range(8): e(f"v_cndmask_b32 v{88+r}, v{88+r}, v108, s[54:55]")
    for q in range(2):
        X = S[q]; m = 110 + q; o = O[q]
        e(f"v_mfma_f32_32x32x16_bf16 v[{X}:{X+15}], v[80:83], v[{Qr[q]}:{Qr[q]+3}], 0")
        e("s_nop 11")
        e(f"v_max3_f32 v112, v{X}, v{X+1}, v{X+2}")
        for r in range(3, 15, 2): e(f"v_max3_f32 v112, v112, v{X+r}, v{X+r+1}")
        e(f"v_max_f32 v112, v112, v{X+15}")
        e("v_mov_b32 v113, v112")
        e("s_nop 1")
        e("v_permlane32_swap_b32 v112, v113")
        e("s_nop 1")
        e(f"v_max3_f32 v112, v112, v113, v{m}")
        e(f"v_cmp_eq_f32 vcc, v{m}, v112")
        e(f"v_sub_f32 v113, v{m}, v112")
        e("v_exp_f32 v113, v113")
        e("s_nop 0")
        e("v_cndmask_b32 v113, v113, 1.0, vcc")
        e(f"v_mov_b32 v{m}, v112")
        e("v_cmp_eq_f32 vcc, 0xff800000, v112")
        e("s_nop 1")
        e("v_cndmask_b32 v112, v112, 0, vcc")
        for r in range(16): e(f"v_mul_f32 v{o+r}, v113, v{o+r}")
        for r in range(16): e(f"v_sub_f32 v{X+r}, v{X+r}, v112")
        for r in range(16): e(f"v_exp_f32 v{X+r}, v{X+r}")
        e("s_nop 1")
        e(f"v_smfmac_f32_32x32x32_bf16 v[{o}:{o+15}], v[88:91], v[{X}:{X+7}], v3")
        e(f"v_smfmac_f32_32x32x32_bf16 v[{o}:{o+15}], v[92:95], v[{X+8}:{X+15}], v3")
    e("s_nop 11")
    e("s_add_u32 s33, s33, 1")
    e("s_cmp_lt_u32 s33, 64")
    e(f"s_cbranch_scc1 {L_sl}")
    e(f"s_branch {L_fin}")

U_BUF = 28928
U_UP = 14464
D_W = 17408
D_QS = 1088

US = 24576
CSBUF = 3 * US

def emit_G(k):
    e = k.e
    prof_begin(k)
    EXP = ENV("EXP", "")
    e("s_load_dwordx4 s[4:7], s[0:1], 48")
    e("s_load_dwordx2 s[12:13], s[0:1], 88")
    e("s_load_dwordx2 s[8:9], s[0:1], 0")
    e("v_lshrrev_b32 v1, 6, v0")
    e("v_and_b32 v2, 63, v0")
    e("v_readfirstlane_b32 s16, v1")
    e("v_lshlrev_b32 v3, 4, v2")
    e("s_and_b32 s14, s3, 3")
    e("s_lshl_b32 s14, s14, 2")
    e("s_bfe_u32 s15, s3, 0x20003")
    e("s_add_u32 s14, s14, s15")
    e("s_bfe_u32 s15, s3, 0x10002")
    e("s_mul_i32 s15, s15, 7")
    e("s_lshr_b32 s17, s3, 5")
    e("s_add_u32 s15, s15, s17")
    e("s_and_b32 s18, s16, 1")
    e("s_lshr_b32 s19, s16, 1")
    L_noup = k.newlabel("noup")
    e("v_lshrrev_b32 v16, 4, v2")
    e("v_lshl_add_u32 v17, v16, 1, s18")
    e("v_bfe_u32 v18, v2, 1, 3")
    e("v_xor_b32 v17, v17, v18")
    e("v_lshlrev_b32 v17, 5, v17")
    e("v_and_b32 v18, 1, v2")
    e("v_lshl_add_u32 v17, v18, 4, v17")
    e("v_mul_u32_u24 v16, 3584, v16")
    e("v_add_u32 v4, v16, v17")
    for n in range(1, 4): e(f"v_add_u32 v{4+n}, {n*(4*3584-1024)}, v4")
    e("v_lshrrev_b32 v16, 2, v2")
    e("v_lshrrev_b32 v17, 4, v2")
    e("v_and_b32 v18, 3, v2")
    e("v_xor_b32 v17, v17, v18")
    e("v_lshlrev_b32 v17, 4, v17")
    e("v_lshl_add_u32 v8, v16, 10, v17")
    e(f"v_add_u32 v9, {16384-1024}, v8")
    e(f"s_mul_i32 s20, s19, {16*3584}")
    e("s_lshl_b32 s21, s15, 8")
    e("s_add_u32 s20, s20, s21")
    e("s_lshl_b32 s21, s18, 13")
    e("s_lshl_b32 s22, s19, 12")
    e("s_add_u32 s21, s21, s22")
    e("s_lshl_b32 s22, s16, 11")
    e("s_add_u32 s22, s22, 16384")
    e("s_lshl_b32 s34, s14, 17")
    e("s_lshl_b32 s23, s16, 15")
    e("s_add_u32 s34, s34, s23")
    e("s_cmp_eq_u32 s18, 1")
    e("s_waitcnt lgkmcnt(0)")
    e("s_cselect_b32 s24, s6, s4")
    e("s_cselect_b32 s25, s7, s5")
    e(f"s_mov_b32 s26, {512*3584}")
    e("s_mov_b32 s27, 0x20000")
    srd(k, 36, 8, 2048 * 1024)
    load_epoch(k)
    srd(k, 28, 12, WS_SIZE)
    e("s_cmp_ge_u32 s3, 224")
    e(f"s_cbranch_scc1 {L_noup}")
    ACC = 128; AF = 16; BF = 48; AR = 64; BR = 68; SEL = 72; vST = 77; ST = 80; CT = 96; CS = 112
    vm = Q(); lg = Q()
    def dma_ops(slot, tag):
        def mk(n):
            def f():
                if n == 0: e(f"s_add_u32 m0, s22, {slot*US}"); e("s_nop 0")
                if n == 2: e(f"s_add_u32 m0, s21, {slot*US}"); e("s_add_u32 s34, s34, 64")
                if n < 2: e(f"buffer_load_dwordx4 v{8+n}, s[36:39], s34 offen offset:{n*1024} lds")
                else: e(f"buffer_load_dwordx4 v{4+n-2}, s[24:27], s20 offen offset:{(n-2)*1024} lds")
                vm.push(tag)
                if n == 5: e(f"s_add_u32 s20, s20, {32*3584}")
            return f
        return [mk(n) for n in range(6)]
    def rdA(slot, ks, t):
        a = AF + 16 * ks + 4 * t
        for q in range(2):
            e(f"ds_read_b64_tr_b16 v[{a+2*q}:{a+2*q+1}], v{AR+t} offset:{slot*US + (16*ks+4*q)*256}")
            lg.push(("A", ks, t))
    def rdB(slot, ks, tb):
        b = BF + 8 * ks + 4 * tb
        e(f"ds_read_b128 v[{b}:{b+3}], v{BR+ks} offset:{slot*US + tb*2048}"); lg.push(("B", ks, tb))
    def lgwait(tags):
        n = lg.need(tags)
        if n is not None: e(f"s_waitcnt lgkmcnt({min(n, 14)})")
    for st in range(3):
        for f in dma_ops(st, ("D", st)): f()
    if ENV("GT", "1") == "1":
        e("v_lshlrev_b32 v16, 7, v2")
        e("s_lshl_b32 s47, s3, 13")
        L_t2 = k.newlabel("t2")
        e("s_cmp_ge_u32 s16, 2")
        e(f"s_cbranch_scc1 {L_t2}")
        e("buffer_load_dword v78, v16, s[24:27], s47 offen ; touch")
        k.label(L_t2)
    e("v_lshrrev_b32 v16, 5, v2")
    e("v_bfe_u32 v17, v2, 2, 2")
    e("v_bfe_u32 v18, v2, 4, 1")
    e("v_lshl_add_u32 v19, v16, 3, v17")
    e("v_lshlrev_b32 v19, 8, v19")
    e("v_lshl_add_u32 v19, v18, 13, v19")
    e("v_and_b32 v20, 3, v2")
    e("v_lshl_add_u32 v19, v20, 3, v19")
    e("v_lshl_add_u32 v17, v17, 1, v18")
    e("s_lshl_b32 s47, s19, 2")
    e("v_xor_b32 v17, s47, v17")
    for t in range(4):
        e(f"v_xor_b32 v20, {t}, v17")
        e(f"v_lshl_add_u32 v{AR+t}, v20, 5, v19")
    e("v_and_b32 v17, 31, v2")
    e(f"v_lshlrev_b32 v{vST}, 4, v17")
    e("v_bfe_u32 v18, v2, 2, 2")
    e("v_xor_b32 v18, v18, v16")
    e("v_lshlrev_b32 v18, 4, v18")
    e("v_lshl_add_u32 v18, v17, 6, v18")
    e("s_lshl_b32 s47, s18, 12")
    e("s_add_u32 s47, s47, 16384")
    e(f"v_add_u32 v{BR}, s47, v18")
    e(f"v_xor_b32 v{BR+1}, 32, v{BR}")
    e("v_lshrrev_b32 v18, 4, v2")
    e("v_xor_b32 v18, v18, v2")
    e("v_and_b32 v18, 1, v18")
    e("v_cmp_eq_u32 vcc, 0, v18")
    e("v_mov_b32 v18, 0x3f803f80")
    e("s_nop 0")
    for r in range(4): e(f"v_cndmask_b32 v{SEL+r}, 0, v18, vcc")
    for r in range(16): e(f"v_mov_b32 v{CS+r}, 0")
    e("s_lshl_b32 s44, s14, 1")
    e("s_add_u32 s44, s44, s18")
    e("s_lshl_b32 s45, s44, 10")
    e(f"s_add_u32 s45, s45, {hx(WS_ST)}")
    for r in range(128): e(f"v_mov_b32 v{ACC+r}, 0")
    e("s_waitcnt lgkmcnt(0)")
    make_tag(k)
    stamp(k, 1)
    e(f"s_waitcnt vmcnt({vm.need([('D', 0)])})")
    e("s_barrier")
    for tb in range(2): rdB(0, 0, tb)
    for t in range(4): rdA(0, 0, t)
    stamp(k, 2)
    e(f"s_setprio {ENV('GP1', '3')}")
    e("s_mov_b32 s48, 5")
    L_th1 = k.newlabel("th1"); L_upd = k.newlabel("upd")
    e("s_cmp_eq_u32 s18, 1")
    e(f"s_cbranch_scc1 {L_th1}")
    vm0, lg0 = list(vm.q), list(lg.q)
    def stage(th, slot, st, last=False, stats=False):
        nxt = (slot + 1) % 3
        pend = []
        for ks in range(2):
            for t in range(4):
                for tb in range(2):
                    lgwait([("A", ks, t), ("B", ks, tb)])
                    a = AF + 16 * ks + 4 * t; b = BF + 8 * ks + 4 * tb; c = ACC + 32 * t + 16 * tb
                    e(f"v_mfma_f32_32x32x16_bf16 v[{c}:{c+15}], v[{a}:{a+3}], v[{b}:{b+3}], v[{c}:{c+15}]")
                    if "nodot" not in EXP and ks == th and tb == 1:
                        e(f"v_mfma_f32_16x16x32_bf16 v[{CS+4*t}:{CS+4*t+3}], v[{a}:{a+3}], v[{SEL}:{SEL+3}], v[{CS+4*t}:{CS+4*t+3}]")
                    i = 2 * t + tb
                    if ks == 0:
                        if i == 0: rdB(slot, 1, 0); rdB(slot, 1, 1)
                        elif i <= 4: rdA(slot, 1, i - 1)
                        if stats and i == 6:
                            e(f"buffer_load_dwordx4 v[{ST}:{ST+3}], v{vST}, s[28:31], s45 offen sc1"); vm.push(("S",))
                            e(f"buffer_load_dwordx4 v[{ST+4}:{ST+7}], v{vST}, s[28:31], s45 offen offset:512 sc1"); vm.push(("S",))
                    elif not last:
                        if i == 0:
                            n = vm.need([("D", st + 1)])
                            lg.q = []
                            e(f"s_waitcnt vmcnt({n}) lgkmcnt(0)")
                            e("s_barrier")
                            rdB(nxt, 0, 0); rdB(nxt, 0, 1)
                            pend = dma_ops(slot, ("D", st + 3))
                        elif i <= 4: rdA(nxt, 0, i - 1)
                        if i >= 2 and pend: pend.pop(0)()
        assert not pend
    for th in range(2):
        if th == 1: k.label(L_th1)
        vm.q, lg.q = list(vm0), list(lg0)
        L = k.newlabel("uloop")
        k.label(L)
        first = None
        for rep in range(3):
            saved = k.lines; k.lines = []
            for slot in range(3): stage(th, slot, 3 * rep + slot, stats=(slot == 1))
            body = k.lines; k.lines = saved
            if rep == 0: first = body; k.lines += body
            else: assert body == first, "loop not in steady state"
        e("s_sub_u32 s48, s48, 1")
        e("s_cmp_lg_u32 s48, 0")
        e(f"s_cbranch_scc1 {L}")
        stage(th, 0, 15, last=True)
        if th == 0: e(f"s_branch {L_upd}")
    k.label(L_upd)
    e(f"s_setprio {ENV('GP2', '3')}")
    stamp(k, 3)
    if "gonly" in EXP:
        e("s_endpgm"); k.label(L_noup); e("s_endpgm"); return
    c1 = -2.0 * math.sqrt(2.0 / math.pi) * math.log2(math.e)
    c2 = c1 * 0.044715
    e("s_mov_b32 s49, 0xffff0000")
    e("s_lshl_b32 s47, s19, 10")
    e(f"s_add_u32 s47, s47, {CSBUF}")
    e("v_lshlrev_b32 v14, 2, v2")
    e("v_add_u32 v14, s47, v14")
    e("v_and_b32 v12, 1, v2")
    e("v_lshlrev_b32 v12, 6, v12")
    e("v_and_b32 v13, 48, v2")
    e("v_add_u32 v12, v12, v13")
    e("s_lshl_b32 s50, s18, 7")
    e("s_add_u32 s50, s50, s47")
    e("v_add_u32 v12, s50, v12")
    for r in range(16): e(f"v_cvt_pk_bf16_f32 v{CT+r}, v{CS+r}, v{CS+r}")
    for r in range(16): e(f"v_and_b32 v{CT+r}, s49, v{CT+r}")
    for r in range(0, 16, 2): e(f"v_pk_add_f32 v[{CS+r}:{CS+r+1}], v[{CS+r}:{CS+r+1}], v[{CT+r}:{CT+r+1}] neg_lo:[0,1] neg_hi:[0,1]")
    for r in range(16): e(f"v_cvt_pk_bf16_f32 v{CT+r}, v{CS+r}, v{CT+r}")
    e("s_mov_b32 exec_lo, 0x00030003")
    e("s_mov_b32 exec_hi, 0x00030003")
    for t in range(4): e(f"ds_write_b128 v12, v[{CT+4*t}:{CT+4*t+3}] offset:{t*256}")
    e("s_mov_b64 exec, -1")
    e(f"s_mov_b32 s40, {hx(f32bits(c2))}")
    e("s_mov_b32 s41, s40")
    e(f"v_mov_b32 v12, {hx(f32bits(c1))}")
    e(f"v_mov_b32 v13, {hx(f32bits(c1))}")
    e(f"s_mul_i32 s35, s44, {2*114688}")
    e("s_lshl_b32 s47, s15, 13")
    e("s_add_u32 s35, s35, s47")
    e("s_lshl_b32 s47, s19, 12")
    e("s_add_u32 s35, s35, s47")
    e(f"s_add_u32 s35, s35, {hx(WS_HF)}")
    e("s_add_u32 s34, s35, 114688")
    e("s_lshl_b32 s44, s44, 12")
    e("s_lshl_b32 s47, s15, 8")
    e("s_add_u32 s44, s44, s47")
    e("s_lshl_b32 s47, s19, 7")
    e("s_add_u32 s44, s44, s47")
    e(f"s_add_u32 s44, s44, {hx(FH)}")
    e("s_waitcnt vmcnt(0) lgkmcnt(0)")
    e("s_barrier")
    for t in range(4):
        e(f"ds_read_b32 v{CT+4*t}, v14 offset:{t*256}")
        e(f"v_mov_b32 v{CT+4*t+1}, 0")
        e(f"v_mov_b32 v{CT+4*t+2}, 0")
        e(f"v_mov_b32 v{CT+4*t+3}, 0")
    Ls = k.newlabel("stp"); Lsd = k.newlabel("stpd")
    e("s_mov_b32 s60, 0x40000")
    k.label(Ls)
    e(f"v_cmp_eq_u64 vcc, s[{TAG}:{TAG+1}], v[{ST+2}:{ST+3}]")
    e(f"v_cmp_eq_u64 s[62:63], s[{TAG}:{TAG+1}], v[{ST+6}:{ST+7}]")
    e("s_and_b64 vcc, vcc, s[62:63]")
    e("s_cmp_eq_u64 vcc, -1")
    e(f"s_cbranch_scc1 {Lsd}")
    e("s_sleep 4")
    e(f"buffer_load_dwordx4 v[{ST}:{ST+3}], v{vST}, s[28:31], s45 offen sc1")
    e(f"buffer_load_dwordx4 v[{ST+4}:{ST+7}], v{vST}, s[28:31], s45 offen offset:512 sc1")
    e("s_waitcnt vmcnt(0)")
    e("s_sub_u32 s60, s60, 1")
    e("s_cmp_lg_u32 s60, 0")
    e(f"s_cbranch_scc1 {Ls}")
    k.label(Lsd)
    NM = 48
    for tb in range(2):
        S_ = ST + 4 * tb
        e(f"v_lshrrev_b32 v{NM+4*tb}, 16, v{S_}")
        e(f"v_or_b32 v{NM+4*tb}, v{NM+4*tb}, v{S_}")
        for r in range(1, 4): e(f"v_mov_b32 v{NM+4*tb+r}, v{NM+4*tb}")
        e(f"v_rcp_f32 v{S_+2}, v{S_+1}")
        e(f"v_mov_b32 v{S_}, v{S_+1}")
        e(f"v_mov_b32 v{S_+3}, v{S_+2}")
    e("s_waitcnt lgkmcnt(0)")
    for t in range(4):
        for tb in range(2):
            c = ACC + 32 * t + 16 * tb
            e(f"v_mfma_f32_32x32x16_bf16 v[{c}:{c+15}], v[{CT+4*t}:{CT+4*t+3}], v[{NM+4*tb}:{NM+4*tb+3}], v[{c}:{c+15}]")
    def down_setup1():
        e("s_load_dwordx2 s[4:5], s[0:1], 64")
        e("s_load_dwordx2 s[6:7], s[0:1], 32")
        e("s_load_dwordx2 s[10:11], s[0:1], 72")
        e("s_and_b32 s14, s3, 7")
        e("s_lshl_b32 s14, s14, 2")
        e("s_lshr_b32 s15, s3, 6")
        e("s_add_u32 s14, s14, s15")
        e("s_bfe_u32 s15, s3, 0x30003")
        e("v_lshrrev_b32 v8, 3, v2")
        e("v_and_b32 v9, 7, v2")
        e("v_lshlrev_b32 v10, 1, v8")
        e("v_and_b32 v10, 4, v10")
        e("v_xor_b32 v10, v10, v9")
        e("v_lshlrev_b32 v10, 4, v10")
        e("v_lshl_add_u32 v6, v8, 10, v10")
        e("v_add_u32 v7, 7168, v6")
        e(f"s_mul_i32 s17, s16, {D_W}")
        e(f"s_mul_i32 s18, s16, {28*16*1024}")
        e("s_lshl_b32 s20, s15, 7")
        e("s_add_u32 s18, s18, s20")
        e("s_waitcnt lgkmcnt(0)")
        srd(k, 24, 4, 1792 * 1024)
    R = 7
    def dma(slot, srdw, soff, tag):
        e(f"s_add_u32 m0, s17, {slot*2048}")
        e("s_nop 0")
        e(f"buffer_load_dwordx4 v6, s[{srdw}:{srdw+3}], {soff} offen lds"); vm.push(tag)
        e(f"buffer_load_dwordx4 v7, s[{srdw}:{srdw+3}], {soff} offen offset:1024 lds"); vm.push(tag)
        e(f"s_add_u32 {soff}, {soff}, 16384")
    down_setup1()
    vm.q = []
    T = 16
    for u in range(8):
        t, tb = u // 2, u % 2
        A = ACC + 32 * t + 16 * tb
        S_ = ST + 4 * tb
        tt = T + 16 * (u % 2)
        if u < R: dma(u, 24, "s18", ("D", u))
        for p in range(4):
            a = A + 2 * p
            e(f"v_pk_mul_f32 v[{a}:{a+1}], v[{a}:{a+1}], v[{S_+2}:{S_+3}]")
        for p in range(4):
            a = A + 2 * p
            e(f"v_pk_mul_f32 v[{tt+2*p}:{tt+2*p+1}], v[{a}:{a+1}], v[{a}:{a+1}]")
        for p in range(4):
            e(f"v_pk_fma_f32 v[{tt+2*p}:{tt+2*p+1}], v[{tt+2*p}:{tt+2*p+1}], s[40:41], v[12:13]")
        for p in range(4):
            a = A + 2 * p
            e(f"v_pk_mul_f32 v[{tt+2*p}:{tt+2*p+1}], v[{tt+2*p}:{tt+2*p+1}], v[{a}:{a+1}]")
        for r in range(8): e(f"v_exp_f32 v{tt+r}, v{tt+r}")
        for p in range(4):
            a = A + 2 * p
            e(f"v_pk_mul_f32 v[{a}:{a+1}], v[{a}:{a+1}], v[{a+8}:{a+9}]")
        for p in range(4):
            e(f"v_pk_fma_f32 v[{tt+2*p}:{tt+2*p+1}], v[{tt+2*p}:{tt+2*p+1}], v[{S_}:{S_+1}], v[{S_}:{S_+1}]")
        for r in range(8): e(f"v_rcp_f32 v{tt+r}, v{tt+r}")
        e("s_nop 0")
        for p in range(4):
            a = A + 2 * p
            e(f"v_pk_mul_f32 v[{a}:{a+1}], v[{a}:{a+1}], v[{tt+2*p}:{tt+2*p+1}]")
        for p in range(4):
            a = A + 2 * p
            e(f"v_cvt_pk_bf16_f32 v{tt+8+p}, v{a}, v{a+1}")
        e(f"buffer_store_dwordx4 v[{tt+8}:{tt+11}], v3, s[28:31], s{35 if tb == 0 else 34} offen offset:{t*1024} sc1")
    stamp(k, 8)
    set_flag(k, 28, "s44", 60)
    stamp(k, 9)
    L_dn = k.newlabel("dn")
    e(f"s_branch {L_dn}")
    k.label(L_noup)
    e("s_waitcnt lgkmcnt(0)")
    make_tag(k)
    down_setup1()
    for u in range(R): dma(u, 24, "s18", None)
    k.label(L_dn)
    e("v_add_u32 v4, 114688, v3")
    e("v_add_u32 v5, 32768, v3")
    e("v_lshlrev_b32 v14, 4, v9")
    e("v_lshl_add_u32 v14, v8, 10, v14")
    e(f"v_mul_u32_u24 v15, {D_QS}, v9")
    e("v_lshl_add_u32 v15, v8, 4, v15")
    e("v_lshrrev_b32 v10, 5, v2")
    e("v_bfe_u32 v11, v2, 2, 2")
    e("v_lshl_add_u32 v10, v10, 2, v11")
    e("v_lshlrev_b32 v10, 7, v10")
    e("v_and_b32 v12, 1, v2")
    e("v_lshl_add_u32 v10, v12, 3, v10")
    e("v_add_u32 v10, s17, v10")
    e("v_bfe_u32 v12, v2, 4, 1")
    e("v_bfe_u32 v13, v2, 1, 1")
    e("v_lshl_add_u32 v12, v12, 1, v13")
    e("v_lshlrev_b32 v11, 1, v11")
    e("v_and_b32 v11, 4, v11")
    e("v_xor_b32 v12, v12, v11")
    e("v_lshl_add_u32 v8, v12, 4, v10")
    e("v_xor_b32 v12, 4, v12")
    e("v_lshl_add_u32 v9, v12, 4, v10")
    e("v_add_u32 v10, s17, v3")
    e(f"s_mul_i32 s19, s14, {2*114688}")
    e(f"s_mul_i32 s21, s16, {28*1024}")
    e("s_add_u32 s19, s19, s21")
    e(f"s_add_u32 s19, s19, {hx(WS_HF)}")
    e("s_lshl_b32 s22, s16, 17")
    e("s_add_u32 s22, s22, s20")
    e("s_lshl_b32 s23, s14, 16")
    e("s_lshl_b32 s21, s16, 13")
    e("s_add_u32 s23, s23, s21")
    e(f"s_add_u32 s23, s23, {hx(WS_OF)}")
    e("s_lshl_b32 s46, s14, 16")
    e("s_lshl_b32 s21, s16, 14")
    e("s_add_u32 s46, s46, s21")
    e("s_add_u32 s46, s46, s20")
    e("s_add_u32 s47, s46, 8192")
    srd(k, 32, 6, 512 * 1024)
    srd(k, 40, 10, 2048 * 1024)
    e("s_lshr_b32 s48, s16, 1")
    e(f"s_mul_i32 s48, s48, {8*D_QS}")
    e("s_and_b32 s49, s16, 1")
    e("s_lshl_b32 s49, s49, 8")
    e("s_add_u32 s48, s48, s49")
    e("v_add_u32 v11, s48, v15")
    e("v_and_b32 v12, 31, v2")
    e("v_min_u32 v13, 27, v12")
    e("v_lshlrev_b32 v12, 7, v12")
    e("v_lshlrev_b32 v13, 7, v13")
    e("s_lshl_b32 s53, s14, 12")
    e(f"s_add_u32 s52, s53, {hx(FH)}")
    e(f"s_add_u32 s53, s53, {hx(FO)}")
    arrive(k, 28, 64)
    FA = 128; SAc = 192; AF = 16; BF = 32
    e(f"s_setprio {ENV('GP3', '0')}")
    wg_poll(k, 1, 13, 28, "s52", 60, sleep=int(ENV("SL1", "2")))
    vm.q = []
    def ldB(slot, v1, soff, tag):
        b = BF + 8 * slot
        e(f"buffer_load_dwordx4 v[{b}:{b+3}], v3, s[28:31], {soff} offen sc1"); vm.push(tag)
        e(f"buffer_load_dwordx4 v[{b+4}:{b+7}], v{v1}, s[28:31], {soff} offen sc1"); vm.push(tag)
        e(f"s_add_u32 {soff}, {soff}, 1024")
    def rdA(slot, ab, base=None):
        for nt in range(2):
            a = (AF + 8 * ab if base is None else base) + 4 * nt
            for q in range(2):
                e(f"ds_read_b64_tr_b16 v[{a+2*q}:{a+2*q+1}], v{8+nt} offset:{slot*2048 + q*1024}")
    def mfmas(acc, abase, slot, first=False):
        for tbh in range(2):
            for nt in range(2):
                c = acc + 16 * (nt + 2 * tbh); a = abase + 4 * nt; b = BF + 8 * slot + 4 * tbh
                cs = "0" if first else f"v[{c}:{c+15}]"
                e(f"v_mfma_f32_32x32x16_bf16 v[{c}:{c+15}], v[{a}:{a+3}], v[{b}:{b+3}], {cs}")
    for s in range(R): ldB(s, 4, "s19", ("B", s))
    stamp(k, 4)
    rdA(0, 0)
    def body(kind):
        for s in range(R):
            ab = s % 2
            if kind == "first": n = min(2 * (R - 1 - s) + 4 * s, 2 + 4 * (R - 2))
            elif kind == "mid": n = 2 + 4 * (R - 2)
            else: n = 2 + 4 * (R - 2 - s) if s < R - 1 else 0
            e(f"s_waitcnt vmcnt({n}) lgkmcnt(0)")
            nxt = (s + 1) % R
            fst = kind == "first" and s == 0
            if s < R - 1:
                rdA(nxt, nxt % 2)
                mfmas(FA, AF + 8 * ab, s, fst)
            else:
                mfmas(FA, AF + 8 * ab, s, fst)
                if kind != "last": rdA(0, 0)
            if kind != "last":
                dma(s, 24, "s18", None)
                ldB(s, 4, "s19", None)
    body("first")
    e("s_mov_b32 s50, 2")
    L = k.newlabel("dloop")
    k.label(L)
    body("mid")
    e("s_sub_u32 s50, s50, 1")
    e("s_cmp_lg_u32 s50, 0")
    e(f"s_cbranch_scc1 {L}")
    body("last")
    e(f"s_setprio {ENV('GP4', '3')}")
    stamp(k, 5)
    e("buffer_load_dwordx4 v[96:99], v14, s[36:39], s46 offen")
    e("buffer_load_dwordx4 v[100:103], v14, s[36:39], s47 offen")
    def red_write(acc):
        for t in range(4):
            for qd in range(4):
                r = acc + 16 * t + 4 * qd
                e(f"ds_write_b128 v10, v[{r}:{r+3}] offset:{(4*t+qd)*D_QS}")
    def red_read(dst):
        for p in range(2):
            for src in range(4):
                for h in range(2):
                    r = BF + 32 * p + 8 * src + 4 * h
                    e(f"ds_read_b128 v[{r}:{r+3}], v11 offset:{src*D_W + h*512 + p*128}")
        for p in range(2):
            e(f"s_waitcnt lgkmcnt({8*(1-p)})")
            b = BF + 32 * p
            for j in range(0, 8, 2):
                e(f"v_pk_add_f32 v[{b+j}:{b+j+1}], v[{b+j}:{b+j+1}], v[{b+8+j}:{b+9+j}]")
                e(f"v_pk_add_f32 v[{b+16+j}:{b+17+j}], v[{b+16+j}:{b+17+j}], v[{b+24+j}:{b+25+j}]")
            for j in range(0, 8, 2):
                e(f"v_pk_add_f32 v[{dst+8*p+j}:{dst+8*p+j+1}], v[{b+j}:{b+j+1}], v[{b+16+j}:{b+17+j}]")
    e("s_nop 6")
    red_write(FA)
    e("s_waitcnt lgkmcnt(0)")
    e("s_barrier")
    G = 104
    red_read(G)
    e("s_barrier")
    for s in range(8): dma(s, 32, "s22", None)
    e(f"s_mov_b32 s48, {hx(f32bits(-math.log2(math.e)))}")
    e("s_mov_b32 s49, s48")
    e("s_mov_b32 s50, 1.0")
    e("s_mov_b32 s51, 1.0")
    for j in range(0, 16, 2): e(f"v_pk_mul_f32 v[{FA+j}:{FA+j+1}], v[{G+j}:{G+j+1}], s[48:49]")
    for j in range(16): e(f"v_exp_f32 v{FA+j}, v{FA+j}")
    e("s_nop 0")
    for j in range(0, 16, 2): e(f"v_pk_add_f32 v[{FA+j}:{FA+j+1}], v[{FA+j}:{FA+j+1}], s[50:51]")
    for j in range(16): e(f"v_rcp_f32 v{FA+j}, v{FA+j}")
    e("s_nop 0")
    for j in range(0, 16, 2): e(f"v_pk_mul_f32 v[{G+j}:{G+j+1}], v[{G+j}:{G+j+1}], v[{FA+j}:{FA+j+1}]")
    e("s_mov_b32 s48, 0xffff0000")
    e("s_waitcnt vmcnt(0)")
    XF = 16
    for p in range(2):
        for r in range(4):
            x = 96 + 4 * p + r
            e(f"v_lshlrev_b32 v{XF+8*p+2*r}, 16, v{x}")
            e(f"v_and_b32 v{XF+8*p+2*r+1}, s48, v{x}")
    WF = 128
    for s in range(8): rdA(s, 0, base=WF + 8 * s)
    e("s_waitcnt lgkmcnt(0)")
    stamp(k, 6)
    e("s_setprio 0")
    wg_poll(k, 0, 12, 28, "s53", 120, sleep=int(ENV("SL2", "2")))
    e("s_setprio 3")
    stamp(k, 10)
    vm.q = []
    for s in range(8): ldB(s, 5, "s23", ("B", s))
    for s in range(8):
        e(f"s_waitcnt vmcnt({vm.need([('B', s)])})")
        mfmas(SAc, WF + 8 * s, s, first=(s == 0))
    e("s_nop 8")
    red_write(SAc)
    e("s_waitcnt lgkmcnt(0)")
    e("s_barrier")
    red_read(FA)
    for p in range(2):
        for r in range(4):
            j = 8 * p + 2 * r
            e(f"v_pk_fma_f32 v[{XF+j}:{XF+j+1}], v[{FA+j}:{FA+j+1}], v[{G+j}:{G+j+1}], v[{XF+j}:{XF+j+1}]")
        for r in range(4):
            j = 8 * p + 2 * r
            e(f"v_cvt_pk_bf16_f32 v{96+4*p+r}, v{XF+j}, v{XF+j+1}")
        e(f"buffer_store_dwordx4 v[{96+4*p}:{99+4*p}], v14, s[40:43], s{46+p} offen")
    e("s_endpgm")

def gen_mega(name):
    k = Kernel(name)
    L_end = k.newlabel("end"); L_g = k.newlabel("roleg")
    k.e("s_cmp_ge_u32 s2, 512")
    k.e(f"s_cbranch_scc1 {L_end}")
    k.e("s_and_b32 s3, s2, 255")
    k.e("s_cmp_ge_u32 s2, 256")
    k.e(f"s_cbranch_scc1 {L_g}")
    k.e(f"s_setprio {ENV('AP0', '3')}")
    if "gonly" in ENV("EXP", ""): k.e(f"s_branch {L_end}")
    else: emit_A(k)
    k.label(L_g)
    k.e(f"s_setprio {ENV('GP0', '2')}")
    emit_G(k)
    k.label(L_end)
    k.e("s_endpgm")
    prof_finish(k, 1)
    k.min_vgpr = 256
    return k
```

```python
import sys, re, os
import common
common.PROF = bool(os.environ.get("PROF"))
from common import *
import k1, attn, ffn, k1min, k1b, mega

REF = open("recurrent_scan__grouped_kv_mqa__geglu_ffn__prompt.s.ref").read()
HEAD = "".join(l + "\n" for l in REF.split("\n") if l.startswith(";") and "@launch" not in l and "Override launch" not in l and "grid=ceil" not in l)

def assemble(launches, kernels, path):
    out = HEAD
    for n, g, b, l in launches:
        out += f"; @launch kernel={n} grid=({g},1,1) block=({b},1,1) lds={l}\n"
    out += '.amdgcn_target "amdgcn-amd-amdhsa--gfx950"\n.text\n'
    bad = False
    for k in kernels:
        for x in k.check_hazards()[:8]: print(k.name, x); bad = True
        for x in k.check_waits()[:8]: print(k.name, x); bad = True
        out += kernel_header(k.name) + k.text()
    out += '.section .rodata,"a"\n'
    for k in kernels:
        v, s, a = k.max_regs()
        v = max(v, getattr(k, "min_vgpr", 0))
        out += ".p2align 6\n" + kernel_desc(k.name, v, max(s, 16), a)
    open(path, "w").write(out)
    if bad: print("!!! static check problems")

def v1(path):
    ks = [k1.gen_k1(), attn.gen_attn(), ffn.gen_up(), ffn.gen_down()]
    assemble([("ln_qkv_kernel", 256, 512, k1.K1_LDS), ("attn_kernel", 256, 256, attn.A_LDS),
              ("up_kernel", 256, 256, ffn.U_LDS), ("down_kernel", 256, 256, ffn.D_LDS)], ks, path)

def uponly(path):
    ks = [k1.gen_k1(), ffn.gen_up()]
    assemble([("ln_qkv_kernel", 256, 512, k1.K1_LDS), ("up_kernel", 256, 256, ffn.U_LDS)], ks, path)

def gen_k2a(name="attn_up_kernel", a_first=True, gprio=3, aprio=0):
    k = Kernel(name)
    L_end = k.newlabel("end"); L_b = k.newlabel("roleb")
    k.e("s_cmp_ge_u32 s2, 512")
    k.e(f"s_cbranch_scc1 {L_end}")
    k.e("s_and_b32 s3, s2, 255")
    k.e("s_cmp_ge_u32 s2, 256")
    k.e(f"s_cbranch_scc1 {L_b}")
    def A():
        if aprio: k.e(f"s_setprio {aprio}")
        attn.emit_attn(k, "s3")
    def G():
        if gprio: k.e(f"s_setprio {gprio}")
        ffn.emit_up(k, "s3")
        k.e("s_endpgm")
    (A if a_first else G)()
    k.label(L_b)
    (G if a_first else A)()
    k.label(L_end)
    k.e("s_endpgm")
    prof_finish(k, 1)
    k.min_vgpr = 256
    return k

def v2(path):
    af = os.environ.get("AFIRST", "1") == "1"
    ks = [k1.gen_k1(), gen_k2a(a_first=af, gprio=int(os.environ.get("GPRIO", "3")), aprio=int(os.environ.get("APRIO", "0"))), ffn.gen_down()]
    assemble([("ln_qkv_kernel", 256, 512, k1.K1_LDS), ("attn_up_kernel", 512, 256, max(attn.A_LDS, ffn.U_LDS)),
              ("down_kernel", 256, 256, ffn.D_LDS)], ks, path)

def gen_k2e(name="main_kernel", a_first=True, qproj=False):
    k = Kernel(name)
    L_end = k.newlabel("end"); L_b = k.newlabel("roleb")
    k.e("s_cmp_ge_u32 s2, 512")
    k.e(f"s_cbranch_scc1 {L_end}")
    k.e("s_and_b32 s3, s2, 255")
    k.e("s_cmp_ge_u32 s2, 256")
    k.e(f"s_cbranch_scc1 {L_b}")
    def pubO(k):
        k.e("s_lshl_b32 s30, s14, 7")
        k.e("s_lshl_b32 s31, s15, 4")
        k.e("s_add_u32 s30, s30, s31")
        k.e("s_lshl_b32 s31, s16, 2")
        k.e("s_add_u32 s30, s30, s31")
        k.e(f"s_add_u32 s30, s30, {hx(WS_FLO)}")
        set_flag(k, 20, "s30", 30, 31, 40)
    def waitH(k):
        k.e("v_bfe_u32 v12, v2, 2, 1")
        k.e("v_and_b32 v13, 3, v2")
        k.e("v_lshlrev_b32 v13, 2, v13")
        k.e("v_lshl_add_u32 v12, v12, 6, v13")
        k.e("s_lshl_b32 s52, s14, 7")
        k.e("s_lshl_b32 s53, s16, 4")
        k.e("s_add_u32 s52, s52, s53")
        k.e(f"s_add_u32 s52, s52, {hx(WS_FLH)}")
        poll_flags(k, 12, 28, "s52", 13, sleep=int(os.environ.get('SLEEP', '8')))
    def waitO(k):
        k.e("v_and_b32 v12, 7, v2")
        k.e("v_lshlrev_b32 v12, 2, v12")
        k.e("s_lshl_b32 s52, s14, 7")
        k.e("s_lshl_b32 s53, s16, 5")
        k.e("s_add_u32 s52, s52, s53")
        k.e(f"s_add_u32 s52, s52, {hx(WS_FLO)}")
        poll_flags(k, 12, 28, "s52", 13, sleep=int(os.environ.get('SLEEP', '8')))
    def A():
        k.e(f"s_setprio {os.environ.get('AP0', '1')}")
        attn.emit_attn(k, "s3", publish=pubO, store_mod=" sc1", qproj=qproj, prio_main=int(os.environ.get('AP1', '1')), touch=os.environ.get('TOUCH', '1') == '1')
    def G():
        k.e(f"s_setprio {os.environ.get('GP0', '3')}")
        ffn.emit_up(k, "s3", store_mod=" sc1", prio=(int(os.environ.get('GP1', '0')), int(os.environ.get('GP2', '3'))))
        k.e("s_lshl_b32 s44, s14, 2")
        k.e("s_add_u32 s44, s44, s16")
        k.e("s_lshl_b32 s44, s44, 6")
        k.e("s_lshl_b32 s45, s15, 2")
        k.e("s_add_u32 s44, s44, s45")
        k.e(f"s_add_u32 s44, s44, {hx(WS_FLH)}")
        set_flag(k, 28, "s44", 60, 61, 46)
        k.e("s_barrier")
        ffn.emit_down(k, "s3", wait_h=waitH, wait_o=waitO, load_mod=" sc1", first=False, sb=4, prio=(int(os.environ.get('GP3', '0')), int(os.environ.get('GP4', '3'))))
    (A if a_first else G)()
    k.label(L_b)
    (G if a_first else A)()
    k.label(L_end)
    k.e("s_endpgm")
    prof_finish(k, 1)
    k.min_vgpr = 256
    return k

def v3(path):
    ks = [k1.gen_k1(), gen_k2e()]
    assemble([("ln_qkv_kernel", 256, 512, k1.K1_LDS), ("main_kernel", 512, 256, max(attn.A_LDS, ffn.U_LDS, ffn.D_LDS))], ks, path)

def v4(path):
    ks = [k1min.gen_k1min(), gen_k2e(qproj=True)]
    assemble([("ln_kv_kernel", 256, 256, k1min.M_LDS), ("main_kernel", 512, 256, 81920)], ks, path)

def v5(path):
    ks = [k1b.gen_k1b(), gen_k2e(qproj=False)]
    assemble([("ln_proj_kernel", 256, 512, k1b.K1_LDS), ("main_kernel", 512, 256, 81920)], ks, path)

def m1(path):
    ks = [mega.gen_mega("mega_kernel")]
    assemble([("mega_kernel", 512, 256, 81920)], ks, path)

if __name__ == "__main__":
    which = sys.argv[1] if len(sys.argv) > 1 else "v1"
    path = sys.argv[2] if len(sys.argv) > 2 else "recurrent_scan__grouped_kv_mqa__geglu_ffn__prompt.s"
    globals()[which](path)
```

```python
from asmlib import *
import math, struct

WS_XN = 0x000000
WS_QF = 0x200000
WS_KV = 0x400000
WS_HF = 0x500000
WS_OF = 0xC00000
WS_FL = 0xE00000
WS_FLH = WS_FL
WS_FLO = WS_FL + 4096
WS_SIZE = 0x1000000

def f32bits(x): return struct.unpack("<I", struct.pack("<f", x))[0]
def hx(x): return "0x%x" % (x & 0xffffffff)
QSCALE = 0.25 * math.log2(math.e)

def srd(k, d, base, size):
    if d != base:
        k.e(f"s_mov_b32 s{d}, s{base}")
        k.e(f"s_mov_b32 s{d+1}, s{base+1}")
    k.e(f"s_mov_b32 s{d+2}, {hx(size)}")
    k.e(f"s_mov_b32 s{d+3}, 0x20000")

def kernel_header(name):
    return f""".globl {name}
.p2align 8
.type {name},@function
{name}:
"""

def kernel_desc(name, vgpr, sgpr, agpr=0):
    accum = (vgpr + 3) // 4 * 4
    nfv = accum + agpr if agpr else vgpr
    return f""".amdhsa_kernel {name}
  .amdhsa_next_free_vgpr {nfv}
  .amdhsa_next_free_sgpr {sgpr}
  .amdhsa_accum_offset {accum}
  .amdhsa_group_segment_fixed_size 0
  .amdhsa_kernarg_size 96
  .amdhsa_user_sgpr_count 2
  .amdhsa_user_sgpr_kernarg_segment_ptr 1
  .amdhsa_system_sgpr_workgroup_id_x 1
.end_amdhsa_kernel
"""

PROF = False
WS_PROF = 0x2000000
NST = 12
def stamp(k, idx):
    if PROF:
        k.e(f"s_memrealtime s[{64+2*idx}:{65+2*idx}]")
        k.e("s_waitcnt lgkmcnt(0)")
def prof_begin(k):
    if PROF:
        for i in range(1, NST): k.e(f"s_mov_b32 s{64+2*i}, 0")
        k.e("s_memrealtime s[64:65]")
        k.e("s_memtime s[88:89]")
def prof_finish(k, slot):
    if not PROF: return
    lab = k.newlabel("prof")
    idxs = [i for i, l in enumerate(k.lines) if l.strip() == "s_endpgm"]
    for i in idxs[:-1]: k.lines[i] = f"  s_branch {lab}"
    k.label(lab)
    e = k.e
    e("s_waitcnt vmcnt(0) lgkmcnt(0)")
    e("s_memtime s[90:91]")
    e("s_memrealtime s[92:93]")
    e("s_getreg_b32 s94, hwreg(HW_REG_XCC_ID)")
    e("s_load_dwordx2 s[96:97], s[0:1], 88")
    e("v_lshrrev_b32 v1, 6, v0")
    e("s_lshl_b32 s95, s2, 9")
    e(f"s_add_u32 s95, s95, {hx(WS_PROF + slot * 0x80000)}")
    e("v_lshlrev_b32 v1, 6, v1")
    e("v_add_u32 v1, s95, v1")
    e("s_waitcnt lgkmcnt(0)")
    for i in range(NST): e(f"v_mov_b32 v{4+i}, s{64+2*i}")
    e("s_sub_u32 s90, s90, s88")
    e("v_mov_b32 v16, s92"); e("v_mov_b32 v17, s90"); e("v_mov_b32 v18, s94"); e("v_mov_b32 v19, 0")
    e("v_and_b32 v2, 63, v0")
    e("v_cmp_eq_u32 vcc, 0, v2")
    e("s_and_saveexec_b64 s[98:99], vcc")
    for q in range(4): e(f"global_store_dwordx4 v1, v[{4+4*q}:{7+4*q}], s[96:97] offset:{16*q}")
    import os
    if os.environ.get("DBGOUT"):
        e("s_load_dwordx2 s[96:97], s[0:1], 80")
        e("v_mov_b32 v1, 0")
        e("v_not_b32 v20, v4")
        e("s_waitcnt lgkmcnt(0)")
        e("global_atomic_umax v1, v20, s[96:97] offset:4")
        e("global_atomic_umax v1, v4, s[96:97] offset:8")
        e("global_atomic_umax v1, v16, s[96:97] offset:12")
        Lg = k.newlabel("dbgg")
        e("s_cmp_ge_u32 s2, 256")
        e(f"s_cbranch_scc1 {Lg}")
        for n, st in enumerate((2, 4, 6, 3, 10)): e(f"global_atomic_umax v1, v{4+st}, s[96:97] offset:{16+4*n}")
        e("s_endpgm")
        k.label(Lg)
        for n, st in enumerate((2, 3, 9, 4, 5, 6, 10)): e(f"global_atomic_umax v1, v{4+st}, s[96:97] offset:{36+4*n}")
    e("s_endpgm")

def poll_flags(k, vaddr, srd_, soff, vtmp, scnt="s60", sleep=2):
    L = k.newlabel("poll"); Ld = k.newlabel("polld")
    k.e(f"s_mov_b32 {scnt}, 0x40000")
    k.label(L)
    k.e(f"buffer_load_dword v{vtmp}, v{vaddr}, s[{srd_}:{srd_+3}], {soff} offen sc1")
    k.e("s_waitcnt vmcnt(0)")
    k.e(f"v_cmp_ne_u32 vcc, 0, v{vtmp}")
    k.e("s_cmp_eq_u64 vcc, -1")
    k.e(f"s_cbranch_scc1 {Ld}")
    k.e(f"s_sleep {sleep}")
    k.e(f"s_sub_u32 {scnt}, {scnt}, 1")
    k.e(f"s_cmp_lg_u32 {scnt}, 0")
    k.e(f"s_cbranch_scc1 {L}")
    k.label(Ld)

def set_flag(k, srd_, soff, vt0, vt1, ssave):
    k.e(f"v_mov_b32 v{vt0}, 0")
    k.e(f"v_mov_b32 v{vt1}, 1")
    k.e("s_waitcnt vmcnt(0)")
    k.e(f"s_mov_b64 s[{ssave}:{ssave+1}], exec")
    k.e("s_mov_b64 exec, 1")
    k.e(f"buffer_store_dword v{vt1}, v{vt0}, s[{srd_}:{srd_+3}], {soff} offen sc1")
    k.e(f"s_mov_b64 exec, s[{ssave}:{ssave+1}]")
```

```python
from common import *
import os
ENV = lambda n, d: os.environ.get(n, d)

FL = 128
FKV = WS_FL
FH = WS_FL + 0x20000
FO = WS_FL + 0x40000
EPOCH = WS_FL + 0x60000
WS_ST = WS_FL + 0x80000
TAG = 58

class Q:
    def __init__(self): self.q = []
    def push(self, tag): self.q.append(tag)
    def need(self, tags):
        idx = [i for i, t in enumerate(self.q) if t in tags]
        if not idx: return None
        n = len(self.q) - 1 - max(idx)
        self.q = self.q[max(idx) + 1:]
        return n

def load_epoch(k):
    k.e(f"s_add_u32 s56, s12, {hx(EPOCH)}")
    k.e("s_addc_u32 s57, s13, 0")
    k.e("s_load_dwordx2 s[56:57], s[56:57], 0")
def make_tag(k):
    k.e(f"s_mul_i32 s{TAG}, s56, 1664525")
    k.e(f"s_add_u32 s{TAG}, s{TAG}, 1013904223")
    k.e(f"s_mul_i32 s{TAG+1}, s57, 22695477")
    k.e(f"s_add_u32 s{TAG+1}, s{TAG+1}, 0x3c6ef35f")

def poll(k, vaddr, srd_, soff, vtmp, nload=1, sleep=None):
    sleep = int(ENV("SLEEP", "4")) if sleep is None else sleep
    L = k.newlabel("poll"); Ld = k.newlabel("polld")
    k.e("s_mov_b32 s60, 0x40000")
    k.label(L)
    if nload == 1: soff = [soff]
    for n in range(nload):
        k.e(f"buffer_load_dwordx2 v[{vtmp+2*n}:{vtmp+2*n+1}], v{vaddr}, s[{srd_}:{srd_+3}], {soff[n]} offen sc1")
    k.e("s_waitcnt vmcnt(0)")
    k.e(f"v_cmp_eq_u64 vcc, s[{TAG}:{TAG+1}], v[{vtmp}:{vtmp+1}]")
    for n in range(1, nload):
        k.e(f"v_cmp_eq_u64 s[62:63], s[{TAG}:{TAG+1}], v[{vtmp+2*n}:{vtmp+2*n+1}]")
        k.e("s_and_b64 vcc, vcc, s[62:63]")
    k.e("s_cmp_eq_u64 vcc, -1")
    k.e(f"s_cbranch_scc1 {Ld}")
    k.e(f"s_sleep {sleep}")
    k.e("s_sub_u32 s60, s60, 1")
    k.e("s_cmp_lg_u32 s60, 0")
    k.e(f"s_cbranch_scc1 {L}")
    k.label(Ld)

def wg_poll(k, wave, *args, **kw):
    L = k.newlabel("np")
    k.e(f"s_cmp_lg_u32 s16, {wave}")
    k.e(f"s_cbranch_scc1 {L}")
    poll(k, *args, **kw)
    k.label(L)
    k.e("s_waitcnt vmcnt(0)")
    k.e("s_barrier")

def set_flag(k, srd_, soff, vt, wait="vmcnt(0)", lanes=0xffff):
    k.e(f"v_mov_b32 v{vt}, s{TAG}")
    k.e(f"v_mov_b32 v{vt+1}, s{TAG+1}")
    k.e(f"v_lshlrev_b32 v{vt+2}, 3, v2")
    if wait: k.e(f"s_waitcnt {wait}")
    k.e(f"s_mov_b64 exec, {lanes}")
    k.e(f"buffer_store_dwordx2 v[{vt}:{vt+1}], v{vt+2}, s[{srd_}:{srd_+3}], {soff} offen sc1")
    k.e("s_mov_b64 exec, -1")

def arrive(k, srd_, vt):
    L = k.newlabel("arr")
    k.e("s_cmp_lg_u32 s16, 0")
    k.e(f"s_cbranch_scc1 {L}")
    k.e("s_load_dwordx2 s[4:5], s[0:1], 80")
    k.e(f"v_mov_b32 v{vt}, s{TAG}")
    k.e(f"v_mov_b32 v{vt+1}, s{TAG+1}")
    k.e(f"v_mov_b32 v{vt+2}, 0")
    k.e(f"v_mov_b32 v{vt+3}, 1")
    k.e("s_waitcnt lgkmcnt(0)")
    k.e("s_mov_b32 s6, 256")
    k.e("s_mov_b32 s7, 0x20000")
    k.e("s_mov_b64 exec, 1")
    k.e(f"buffer_atomic_add v{vt+3}, v{vt+2}, s[4:7], 0 offen sc0 sc1")
    k.e("s_waitcnt vmcnt(0)")
    k.e(f"v_readfirstlane_b32 s61, v{vt+3}")
    k.e("s_mov_b64 exec, -1")
    k.e("s_cmp_lg_u32 s61, 511")
    k.e(f"s_cbranch_scc1 {L}")
    k.e("s_mov_b64 exec, 1")
    k.e(f"s_mov_b32 s61, {hx(EPOCH)}")
    k.e(f"buffer_store_dwordx2 v[{vt}:{vt+1}], v{vt+2}, s[{srd_}:{srd_+3}], s61 offen sc1")
    k.e("s_mov_b64 exec, -1")
    k.label(L)

A_ONES = 65536

def emit_A(k):
    e = k.e
    prof_begin(k)
    e("s_load_dwordx4 s[4:7], s[0:1], 0")
    e("s_load_dwordx4 s[8:11], s[0:1], 16")
    e("s_load_dwordx2 s[12:13], s[0:1], 88")
    e("s_load_dwordx2 s[50:51], s[0:1], 64")
    e("s_load_dwordx2 s[52:53], s[0:1], 32")
    e("s_and_b32 s14, s3, 7")
    e("s_lshl_b32 s14, s14, 2")
    e("s_lshr_b32 s15, s3, 6")
    e("s_add_u32 s14, s14, s15")
    e("s_bfe_u32 s15, s3, 0x30003")
    e("s_lshl_b32 s33, s14, 2")
    e("s_and_b32 s18, s15, 3")
    e("s_add_u32 s33, s33, s18")
    e("v_lshrrev_b32 v1, 6, v0")
    e("v_and_b32 v2, 63, v0")
    e("v_readfirstlane_b32 s16, v1")
    e("v_lshrrev_b32 v6, 4, v2")
    e("v_and_b32 v7, 15, v2")
    e("v_lshlrev_b32 v5, 10, v6")
    e("v_lshl_add_u32 v5, v7, 4, v5")
    e("v_lshlrev_b32 v12, 4, v2")
    e("s_lshl_b32 s17, s33, 14")
    e("s_lshl_b32 s18, s16, 12")
    e("s_add_u32 s17, s17, s18")
    e("s_lshl_b32 s19, s16, 12")
    e("s_lshl_b32 s37, s16, 14")
    e("s_add_u32 s37, s37, 16384")
    e("v_lshrrev_b32 v8, 3, v2")
    e("v_and_b32 v9, 7, v2")
    e("v_lshlrev_b32 v10, 1, v8")
    e("v_and_b32 v10, 4, v10")
    e("v_xor_b32 v10, v10, v9")
    e("v_lshlrev_b32 v10, 4, v10")
    e("v_lshl_add_u32 v120, v8, 10, v10")
    for n in range(1, 4): e(f"v_add_u32 v{120+n}, {n*7168}, v120")
    e("s_lshl_b32 s34, s16, 17")
    e("s_lshl_b32 s35, s15, 7")
    e("s_add_u32 s34, s34, s35")
    e("s_cmp_ge_u32 s15, 4")
    e("s_waitcnt lgkmcnt(0)")
    e("s_cselect_b32 s28, s10, s8")
    e("s_cselect_b32 s29, s11, s9")
    srd(k, 44, 4, 2048 * 1024)
    for m in range(4):
        e(f"buffer_load_dwordx4 v[{16+4*m}:{19+4*m}], v5, s[44:47], s17 offen offset:{m*256}")
    e("s_mov_b32 s30, 16384")
    e("s_mov_b32 s31, 0x20000")
    e("s_mov_b32 m0, s19")
    load_epoch(k)
    for q in range(4):
        e(f"buffer_load_dwordx4 v12, s[28:31], s19 offen offset:{q*1024} lds")
    srd(k, 20, 12, WS_SIZE)
    e("s_mov_b32 s4, s6")
    e("s_mov_b32 s5, s7")
    e(f"s_mov_b32 s6, {512*1024}")
    e("s_mov_b32 s7, 0x20000")
    def dma16(vo, srdw, soff, step):
        e("s_mov_b32 s40, s37")
        for g in range(4):
            e("s_mov_b32 m0, s40")
            e("s_add_u32 s40, s40, 4096")
            for n in range(4):
                e(f"buffer_load_dwordx4 v{vo[n]}, s[{srdw}:{srdw+3}], {soff} offen offset:{n*1024} lds")
            e(f"s_add_u32 {soff}, {soff}, {step}")
    wq_dma = lambda: dma16([120, 121, 122, 123], 4, "s34", 32768)
    xq_dma = lambda: dma16([112, 113, 114, 115], 44, "s35", 16384)
    WQE = ENV("WQE", "1")
    if WQE == "1": wq_dma()
    e("v_lshrrev_b32 v3, 5, v2")
    e("v_and_b32 v4, 31, v2")
    for j in range(4):
        e(f"v_add_u32 v10, {4*j}, v6")
        e("v_xor_b32 v11, v10, v7")
        e("v_lshlrev_b32 v11, 4, v11")
        e(f"v_lshl_add_u32 v{112+j}, v10, 10, v11")
        if j: e(f"v_subrev_u32 v{112+j}, {j*1024}, v{112+j}")
    e("s_lshl_b32 s35, s14, 16")
    e("s_lshl_b32 s38, s16, 8")
    e("s_add_u32 s35, s35, s38")
    e("v_bfe_u32 v9, v2, 2, 2")
    e("v_lshl_add_u32 v8, v3, 3, v9")
    e("v_lshlrev_b32 v8, 7, v8")
    e("v_and_b32 v10, 1, v2")
    e("v_lshl_add_u32 v8, v10, 3, v8")
    e("v_add_u32 v8, s37, v8")
    e("v_bfe_u32 v10, v2, 4, 1")
    e("v_bfe_u32 v11, v2, 1, 1")
    e("v_lshl_add_u32 v10, v10, 1, v11")
    e("v_lshlrev_b32 v11, 1, v9")
    e("v_and_b32 v11, 4, v11")
    e("v_xor_b32 v10, v10, v11")
    e("v_lshl_add_u32 v125, v10, 4, v8")
    e("v_xor_b32 v10, 4, v10")
    e("v_lshl_add_u32 v126, v10, 4, v8")
    e("v_xor_b32 v10, v7, v3")
    e("v_lshlrev_b32 v10, 4, v10")
    e("v_lshl_add_u32 v124, v4, 8, v10")
    e("v_add_u32 v124, s37, v124")
    e("v_lshl_add_u32 v10, v6, 3, v9")
    e("v_and_b32 v11, 3, v2")
    e("v_lshlrev_b32 v11, 3, v11")
    e("v_lshl_add_u32 v118, v10, 5, v11")
    e("s_lshl_b32 s38, s16, 2")
    e("v_add_u32 v10, s38, v6")
    e("v_xor_b32 v11, v10, v7")
    e("v_lshlrev_b32 v11, 4, v11")
    e("v_lshl_add_u32 v117, v10, 10, v11")
    for q in range(4):
        e(f"v_add_u32 v10, {4*q}, v6")
        e("v_xor_b32 v10, v10, v7")
        e("v_lshlrev_b32 v10, 4, v10")
        e(f"v_lshl_add_u32 v{108+q}, v7, 10, v10")
    e("s_mov_b32 s36, 0xffff0000")
    NW = 16 if WQE == "1" else 0
    e(f"s_waitcnt vmcnt({4 + NW})")
    stamp(k, 1)
    F = 48; A = 80
    for r in range(16):
        e(f"v_lshlrev_b32 v{F+2*r}, 16, v{16+r}")
        e(f"v_and_b32 v{F+2*r+1}, s36, v{16+r}")
    def tree():
        e(f"v_pk_add_f32 v[{A}:{A+1}], v[{A}:{A+1}], v[{A+2}:{A+3}]")
        e(f"v_pk_add_f32 v[{A+4}:{A+5}], v[{A+4}:{A+5}], v[{A+6}:{A+7}]")
        e(f"v_pk_add_f32 v[{A}:{A+1}], v[{A}:{A+1}], v[{A+4}:{A+5}]")
        e(f"v_add_f32 v{A}, v{A}, v{A+1}")
        for d in ("quad_perm:[1,0,3,2]", "quad_perm:[2,3,0,1]", "row_half_mirror", "row_mirror"):
            e("s_nop 1")
            e(f"v_add_f32_dpp v{A}, v{A}, v{A} {d} row_mask:0xf bank_mask:0xf")
    for a in range(4):
        e(f"v_pk_add_f32 v[{A+2*a}:{A+2*a+1}], v[{F+2*a}:{F+2*a+1}], v[{F+8+2*a}:{F+9+2*a}]")
    for m in (2, 3):
        for a in range(4):
            e(f"v_pk_add_f32 v[{A+2*a}:{A+2*a+1}], v[{A+2*a}:{A+2*a+1}], v[{F+8*m+2*a}:{F+8*m+2*a+1}]")
    tree()
    e(f"s_waitcnt vmcnt({NW})")
    e("s_barrier")
    if WQE != "1": wq_dma()
    W = 128; X = 192
    L_nw = k.newlabel("nw")
    e("s_cmp_lg_u32 s16, 0")
    e(f"s_cbranch_scc1 {L_nw}")
    for s_ in range(16):
        for q in range(2):
            e(f"ds_read_b64_tr_b16 v[{W+4*s_+2*q}:{W+4*s_+2*q+1}], v118 offset:{s_*1024+q*128}")
    k.label(L_nw)
    e(f"v_mul_f32 v88, {hx(f32bits(-1.0/512))}, v{A}")
    e("v_cvt_pk_bf16_f32 v90, v88, v88")
    e("v_and_b32 v90, s36, v90")
    e("v_mov_b32 v91, v90")
    e("v_sub_f32 v89, v90, v88")
    for a in range(16):
        e(f"v_pk_add_f32 v[{F+2*a}:{F+2*a+1}], v[{F+2*a}:{F+2*a+1}], v[90:91]")
    for a in range(4):
        e(f"v_pk_mul_f32 v[{A+2*a}:{A+2*a+1}], v[{F+2*a}:{F+2*a+1}], v[{F+2*a}:{F+2*a+1}]")
    for m in (1, 2, 3):
        for a in range(4):
            p = F + 8 * m + 2 * a
            e(f"v_pk_fma_f32 v[{A+2*a}:{A+2*a+1}], v[{p}:{p+1}], v[{p}:{p+1}], v[{A+2*a}:{A+2*a+1}]")
    e("v_mul_f32 v89, v89, v89")
    e(f"s_mov_b32 s38, {hx(f32bits(1.0/512))}")
    tree()
    e(f"v_fma_f32 v{A}, v{A}, s38, -v89")
    e(f"v_max_f32 v{A}, 0, v{A}")
    e(f"v_cvt_pk_bf16_f32 v{A}, v{A}, v{A}")
    e(f"v_lshlrev_b32 v{A}, 16, v{A}")
    e(f"v_add_f32 v{A}, {hx(f32bits(1e-5))}, v{A}")
    e(f"v_cvt_pk_bf16_f32 v{A}, v{A}, v{A}")
    e(f"v_lshlrev_b32 v{A}, 16, v{A}")
    e(f"v_sqrt_f32 v{A}, v{A}")
    e("s_waitcnt lgkmcnt(0)")
    make_tag(k)
    e(f"v_cvt_pk_bf16_f32 v{A}, v{A}, v{A}")
    e(f"v_lshlrev_b32 v93, 16, v{A}")
    e("v_rcp_f32 v88, v93")
    e("v_mov_b32 v92, v90")
    e(f"v_mov_b32 v94, s{TAG}")
    e(f"v_mov_b32 v95, s{TAG+1}")
    e("v_lshlrev_b32 v96, 4, v6")
    e("s_lshr_b32 s38, s17, 6")
    e(f"s_add_u32 s38, s38, {hx(WS_ST)}")
    e("s_cmp_ge_u32 s15, 4")
    e(f"s_cselect_b32 s38, {hx(WS_SIZE)}, s38")
    e("s_mov_b32 exec_lo, 0x00010001")
    e("s_mov_b32 exec_hi, 0x00010001")
    e("buffer_store_dwordx4 v[92:95], v96, s[20:23], s38 offen sc1")
    e("s_mov_b64 exec, -1")
    e("s_barrier")
    e("v_mov_b32 v89, v88")
    for m in range(4):
        for a in range(4):
            p = F + 8 * m + 2 * a
            e(f"v_cvt_pk_bf16_f32 v{16+4*m+a}, v{p}, v{p+1}")
        for a in range(4):
            p = F + 8 * m + 2 * a
            e(f"v_lshlrev_b32 v{p}, 16, v{16+4*m+a}")
            e(f"v_and_b32 v{p+1}, s36, v{16+4*m+a}")
        for a in range(4):
            p = F + 8 * m + 2 * a
            e(f"v_pk_mul_f32 v[{p}:{p+1}], v[{p}:{p+1}], v[88:89]")
        for a in range(4):
            p = F + 8 * m + 2 * a
            e(f"v_cvt_pk_bf16_f32 v{16+4*m+a}, v{p}, v{p+1}")
        e(f"ds_write_b128 v117, v[{16+4*m}:{19+4*m}] offset:{m*256}")
    AF = 48; XB = 128; ACC = 192
    def rd_wq():
        for ks in range(8):
            for nt in range(2):
                a = AF + 8 * ks + 4 * nt
                for q in range(2):
                    e(f"ds_read_b64_tr_b16 v[{a+2*q}:{a+2*q+1}], v{125+nt} offset:{ks*2048 + q*512}")
    e("s_waitcnt lgkmcnt(0)")
    e("s_barrier")
    stamp(k, 7)
    L_q = k.newlabel("q"); L_q1 = k.newlabel("q1")
    e("s_cmp_lg_u32 s16, 0")
    e(f"s_cbranch_scc1 {L_q1}")
    for s_ in range(16):
        e(f"ds_read_b128 v[{X+4*s_}:{X+4*s_+3}], v{108 + s_ % 4} offset:{(s_ // 4)*256}")
    e("s_lshr_b32 s38, s33, 4")
    e("s_lshl_b32 s38, s38, 14")
    e("s_bfe_u32 s39, s33, 0x30001")
    e("s_lshl_b32 s39, s39, 10")
    e("s_add_u32 s38, s38, s39")
    e(f"s_add_u32 s38, s38, {hx(WS_KV)}")
    e("s_and_b32 s39, s33, 1")
    L_v = k.newlabel("v"); L_st = k.newlabel("st")
    e("s_cmp_ge_u32 s15, 4")
    e(f"s_cbranch_scc1 {L_v}")
    def chain(swap):
        for s_ in range(16):
            e(f"s_waitcnt lgkmcnt({min(14, 15-s_)})")
            a, b = W + 4 * s_, X + 4 * s_
            if swap: a, b = b, a
            acc = 32 + 4 * (s_ % 2)
            c = "0" if s_ < 2 else f"v[{acc}:{acc+3}]"
            e(f"v_mfma_f32_16x16x32_bf16 v[{acc}:{acc+3}], v[{a}:{a+3}], v[{b}:{b+3}], {c}")
    chain(False)
    e("v_lshlrev_b32 v13, 4, v7")
    e("v_and_b32 v14, 1, v6")
    e("v_lshl_add_u32 v13, v14, 9, v13")
    e("v_lshrrev_b32 v14, 1, v6")
    e("v_lshl_add_u32 v13, v14, 3, v13")
    e("s_lshl_b32 s39, s39, 8")
    e("s_add_u32 s38, s38, s39")
    e(f"s_branch {L_st}")
    k.label(L_v)
    chain(True)
    e("v_lshlrev_b32 v13, 4, v7")
    e("v_lshrrev_b32 v14, 1, v6")
    e("v_lshl_add_u32 v13, v14, 8, v13")
    e("v_and_b32 v14, 1, v6")
    e("v_lshl_add_u32 v13, v14, 3, v13")
    e("s_lshl_b32 s39, s39, 9")
    e("s_add_u32 s38, s38, s39")
    e("s_add_u32 s38, s38, 8192")
    k.label(L_st)
    e("s_nop 0")
    e("v_pk_add_f32 v[32:33], v[32:33], v[36:37]")
    e("v_pk_add_f32 v[34:35], v[34:35], v[38:39]")
    e("v_cvt_pk_bf16_f32 v32, v32, v33")
    e("v_cvt_pk_bf16_f32 v33, v34, v35")
    e("buffer_store_dwordx2 v[32:33], v13, s[20:23], s38 offen sc1")
    stamp(k, 8)
    e("s_waitcnt vmcnt(2)")
    e(f"s_branch {L_q}")
    k.label(L_q1)
    e("s_waitcnt vmcnt(1)")
    k.label(L_q)
    rd_wq()
    e("s_waitcnt lgkmcnt(0)")
    xq_dma()
    ST = 32
    e("v_lshlrev_b32 v8, 4, v4")
    e("s_lshl_b32 s41, s14, 10")
    e(f"s_add_u32 s41, s41, {hx(WS_ST)}")
    e(f"buffer_load_dwordx4 v[{ST}:{ST+3}], v8, s[20:23], s41 offen sc1")
    e(f"buffer_load_dwordx4 v[{ST+4}:{ST+7}], v8, s[20:23], s41 offen offset:512 sc1")
    L_nf = k.newlabel("nf")
    e("s_cmp_lg_u32 s16, 0")
    e(f"s_cbranch_scc1 {L_nf}")
    e("s_lshr_b32 s38, s15, 2")
    e("s_lshl_b32 s38, s38, 10")
    e("s_bfe_u32 s39, s33, 0x10003")
    e("s_lshl_b32 s39, s39, 9")
    e("s_add_u32 s38, s38, s39")
    e("s_lshr_b32 s39, s33, 4")
    e("s_lshl_b32 s39, s39, 6")
    e("s_add_u32 s38, s38, s39")
    e("s_and_b32 s39, s33, 7")
    e("s_lshl_b32 s39, s39, 3")
    e("s_add_u32 s38, s38, s39")
    e(f"s_add_u32 s38, s38, {hx(FKV)}")
    set_flag(k, 20, "s38", 28, wait="vmcnt(18)", lanes=1)
    stamp(k, 2)
    k.label(L_nf)
    SEL = 16; CS = 20
    e("v_lshrrev_b32 v9, 4, v2")
    e("v_lshrrev_b32 v10, 2, v2")
    e("v_xor_b32 v9, v9, v10")
    e("v_and_b32 v9, 1, v9")
    e("v_cmp_eq_u32 vcc, 0, v9")
    e("v_mov_b32 v9, 0x3f803f80")
    e("s_nop 0")
    for r in range(4): e(f"v_cndmask_b32 v{SEL+r}, 0, v9, vcc")
    e("s_nop 1")
    for ks in range(8):
        for nt in range(2):
            a = AF + 8 * ks + 4 * nt
            c = "0" if ks == 0 else f"v[{CS+4*nt}:{CS+4*nt+3}]"
            e(f"v_mfma_f32_16x16x32_bf16 v[{CS+4*nt}:{CS+4*nt+3}], v[{SEL}:{SEL+3}], v[{a}:{a+3}], {c}")
    e("v_mov_b32 v3, 0xdddd")
    e("s_lshl_b32 s17, s14, 16")
    e("s_lshl_b32 s18, s15, 12")
    e("s_add_u32 s17, s17, s18")
    e("s_lshl_b32 s18, s16, 10")
    e("s_add_u32 s17, s17, s18")
    e(f"s_add_u32 s24, s12, {hx(WS_KV)}")
    e("s_addc_u32 s25, s13, 0")
    e("s_mov_b32 s26, 0x20000")
    e("s_mov_b32 s27, 0x20000")
    e("v_add_u32 v127, s37, v12")
    e("s_lshl_b32 s40, s16, 11")
    e("s_add_u32 s40, s40, 16384")
    e("v_add_u32 v119, s40, v12")
    e("v_cmp_lt_u32 vcc, 31, v2")
    for nt in range(2):
        c = CS + 4 * nt
        e(f"v_cvt_pk_bf16_f32 v{c+1}, v{c}, v{c}")
        e(f"v_and_b32 v{c+1}, s36, v{c+1}")
        e(f"v_sub_f32 v{c}, v{c}, v{c+1}")
        e(f"v_cndmask_b32 v{c}, v{c+1}, v{c}, vcc")
        e(f"v_cvt_pk_bf16_f32 v{c}, v{c}, 0")
        for r in range(1, 4): e(f"v_mov_b32 v{c+r}, 0")
    for ks in range(1, 8): e(f"v_xor_b32 v{40+ks}, {ks*32}, v124")
    e("s_waitcnt vmcnt(2)")
    stamp(k, 4)
    for ks in range(8):
        ad = 124 if ks == 0 else 40 + ks
        for tbh in range(2):
            e(f"ds_read_b128 v[{XB+8*ks+4*tbh}:{XB+8*ks+4*tbh+3}], v{ad} offset:{tbh*8192}")
    for ks in range(8):
        e(f"s_waitcnt lgkmcnt({min(14, 2*(7-ks))})")
        for tbh in range(2):
            for nt in range(2):
                c = ACC + 16 * (nt + 2 * tbh); a = AF + 8 * ks + 4 * nt; b = XB + 8 * ks + 4 * tbh
                cs = "0" if ks == 0 else f"v[{c}:{c+15}]"
                e(f"v_mfma_f32_32x32x16_bf16 v[{c}:{c+15}], v[{a}:{a+3}], v[{b}:{b+3}], {cs}")
    e("v_lshlrev_b32 v9, 3, v2")
    e("s_lshl_b32 s42, s16, 9")
    e(f"s_add_u32 s42, s42, {hx(FKV)}")
    Ls = k.newlabel("stp"); Lsd = k.newlabel("stpd")
    e("s_mov_b32 s60, 0x40000")
    k.label(Ls)
    e("s_waitcnt vmcnt(0)")
    e(f"v_cmp_eq_u64 vcc, s[{TAG}:{TAG+1}], v[{ST+2}:{ST+3}]")
    e(f"v_cmp_eq_u64 s[62:63], s[{TAG}:{TAG+1}], v[{ST+6}:{ST+7}]")
    e("s_and_b64 vcc, vcc, s[62:63]")
    e("s_cmp_eq_u64 vcc, -1")
    e(f"s_cbranch_scc1 {Lsd}")
    e("s_sleep 2")
    e(f"buffer_load_dwordx4 v[{ST}:{ST+3}], v8, s[20:23], s41 offen sc1")
    e(f"buffer_load_dwordx4 v[{ST+4}:{ST+7}], v8, s[20:23], s41 offen offset:512 sc1")
    e("s_sub_u32 s60, s60, 1")
    e("s_cmp_lg_u32 s60, 0")
    e(f"s_cbranch_scc1 {Ls}")
    e("s_waitcnt vmcnt(0)")
    k.label(Lsd)
    NM = 40
    e(f"s_mov_b32 s40, {hx(f32bits(QSCALE))}")
    for tbh in range(2):
        S_ = ST + 4 * tbh
        e(f"v_lshrrev_b32 v{NM+4*tbh}, 16, v{S_}")
        for r in range(1, 4): e(f"v_mov_b32 v{NM+4*tbh+r}, 0")
        e(f"v_rcp_f32 v{S_+2}, v{S_+1}")
    for tbh in range(2):
        S_ = ST + 4 * tbh
        e(f"v_mul_f32 v{S_+2}, s40, v{S_+2}")
        e(f"v_mov_b32 v{S_+3}, v{S_+2}")
    for tbh in range(2):
        for nt in range(2):
            c = ACC + 16 * (nt + 2 * tbh)
            e(f"v_mfma_f32_32x32x16_bf16 v[{c}:{c+15}], v[{CS+4*nt}:{CS+4*nt+3}], v[{NM+4*tbh}:{NM+4*tbh+3}], v[{c}:{c+15}]")
    stamp(k, 9)
    e("buffer_load_dwordx2 v[116:117], v9, s[20:23], s42 offen sc1")
    e("s_nop 7")
    for t in range(4):
        for qd in range(4):
            r = ACC + 16 * t + 4 * qd
            e(f"ds_write_b128 v127, v[{r}:{r+3}] offset:{(4*t+qd)*1024}")
    e("s_waitcnt lgkmcnt(0)")
    e("s_barrier")
    for tbh in range(2):
        for src in range(4):
            for qq in range(2):
                r = XB + 32 * tbh + 8 * src + 4 * qq
                e(f"ds_read_b128 v[{r}:{r+3}], v119 offset:{src*16384 + tbh*8192 + qq*1024}")
    def dma(soff, m0v):
        e(f"s_mov_b32 m0, {m0v}")
        e("s_nop 0")
        for q in range(4):
            e(f"buffer_load_dwordx4 v12, s[24:27], {soff} offen offset:{q*1024} sc1 lds")
    Lk = k.newlabel("kvp"); Lkd = k.newlabel("kvpd")
    e("s_mov_b32 s60, 0x40000")
    k.label(Lk)
    e("s_waitcnt vmcnt(0)")
    e(f"v_cmp_eq_u64 vcc, s[{TAG}:{TAG+1}], v[116:117]")
    e("s_cmp_eq_u64 vcc, -1")
    e(f"s_cbranch_scc1 {Lkd}")
    e(f"s_sleep {ENV('SL1', '4')}")
    e("buffer_load_dwordx2 v[116:117], v9, s[20:23], s42 offen sc1")
    e("s_sub_u32 s60, s60, 1")
    e("s_cmp_lg_u32 s60, 0")
    e(f"s_cbranch_scc1 {Lk}")
    e("s_waitcnt vmcnt(0)")
    k.label(Lkd)
    stamp(k, 5)
    dma("s19", "s19")
    SA, SB, O0, O1 = 16, 32, 48, 64
    for r in range(16):
        e(f"v_mov_b32 v{O0+r}, 0")
        e(f"v_mov_b32 v{O1+r}, 0")
    e("v_and_b32 v13, 11, v2")
    e("v_cmp_eq_u32 vcc, 0, v13")
    e("v_mov_b32 v13, 0x3f803f80")
    e("s_lshl_b32 s18, s16, 11")
    e(f"s_add_u32 s18, s18, {A_ONES}")
    for r in range(4): e(f"v_cndmask_b32 v{16+r}, 0, v13, vcc")
    e("v_add_u32 v15, s18, v12")
    e("s_waitcnt lgkmcnt(0)")
    e("s_barrier")
    e("ds_write_b128 v15, v[16:19]")
    e("ds_write_b128 v15, v[16:19] offset:1024")
    for tbh in range(2):
        b = XB + 32 * tbh
        for j in range(0, 8, 2):
            e(f"v_pk_add_f32 v[{b+j}:{b+j+1}], v[{b+j}:{b+j+1}], v[{b+8+j}:{b+9+j}]")
            e(f"v_pk_add_f32 v[{b+16+j}:{b+17+j}], v[{b+16+j}:{b+17+j}], v[{b+24+j}:{b+25+j}]")
        for j in range(0, 8, 2):
            e(f"v_pk_add_f32 v[{b+j}:{b+j+1}], v[{b+j}:{b+j+1}], v[{b+16+j}:{b+17+j}]")
        for j in range(0, 8, 2):
            e(f"v_pk_mul_f32 v[{b+j}:{b+j+1}], v[{b+j}:{b+j+1}], v[{ST+4*tbh+2}:{ST+4*tbh+3}]")
        for j in range(4):
            e(f"v_cvt_pk_bf16_f32 v{4+4*tbh+j}, v{b+2*j}, v{b+2*j+1}")
    e("s_add_u32 s30, s19, 16384")
    dma("s30", "s30")
    e("s_add_u32 s30, s30, 16384")
    dma("s30", "s30")
    e("s_add_u32 s30, s30, 16384")
    e("v_and_b32 v13, 15, v2")
    e("v_lshlrev_b32 v13, 4, v13")
    e("v_lshrrev_b32 v14, 5, v2")
    e("v_lshl_add_u32 v13, v14, 8, v13")
    e("v_bfe_u32 v14, v2, 4, 1")
    e(f"v_mov_b32 v15, {A_ONES - 8192}")
    e("v_mad_u32_u24 v13, v14, v15, v13")
    e("v_xor_b32 v14, 1, v14")
    KF = [80, 84]; VF = [88, 96]
    vKc, vKn, vVc, vVn = 104, 105, 106, 107
    e(f"v_mov_b32 v{vKc}, v12")
    e(f"v_add_u32 v{vKn}, 16384, v12")
    e(f"v_mov_b32 v{vVc}, v13")
    e("s_mov_b32 s31, 16384")
    e(f"v_mad_u32_u24 v{vVn}, v14, s31, v13")
    e("s_mov_b32 s49, 57344")
    e("s_lshr_b32 s42, s3, 3")
    e("s_mul_i32 s48, s16, 24576")
    e("s_cmp_eq_u32 s16, 3")
    e("s_cselect_b32 s44, s52, s50")
    e("s_cselect_b32 s45, s53, s51")
    e("s_cselect_b32 s43, 16384, s49")
    e("s_cselect_b32 s48, 0, s48")
    e("s_mul_i32 s42, s42, s43")
    e("s_add_u32 s46, s42, s43")
    e("s_add_u32 s42, s42, s48")
    e("s_add_u32 s43, s42, 24576")
    e("s_min_u32 s46, s46, s43")
    e("s_mov_b32 s47, 0x20000")
    e("v_lshlrev_b32 v108, 7, v2")
    S = [SA, SB]; O = [O0, O1]; Qr = [4, 8]
    def rdK(t):
        a = vKc if t < 8 else vKn
        e(f"ds_read_b128 v[{KF[t%2]}:{KF[t%2]+3}], v{a} offset:{(t%8)*1024}")
    def rdV(t):
        a = vVc if t < 8 else vVn
        for c in range(2):
            e(f"ds_read_b128 v[{VF[t%2]+4*c}:{VF[t%2]+4*c+3}], v{a} offset:{8192+(t%8)*1024+c*512}")
    def ex(b, lo, hi):
        for r in range(lo, hi): e(f"v_exp_f32 v{b+r}, v{b+r}")
    def qk(X, t, q):
        e(f"v_mfma_f32_32x32x16_bf16 v[{X}:{X+15}], v[{KF[t%2]}:{KF[t%2]+3}], v[{Qr[q]}:{Qr[q]+3}], 0")
    e("s_waitcnt vmcnt(8) lgkmcnt(0)")
    e("s_barrier")
    stamp(k, 6)
    rdK(0); rdK(1); rdV(0)
    e("s_waitcnt lgkmcnt(3)")
    qk(SA, 0, 0)
    qk(SB, 0, 1)
    e("s_nop 10")
    ex(SA, 0, 5)
    e("s_mov_b32 s33, 8")
    e(f"s_setprio {ENV('AP1', '1')}")
    L_loop = k.newlabel("aloop")
    k.label(L_loop)
    for t in range(8):
        for q in range(2):
            X, Y = S[q], S[1 - q]
            V0, V1 = VF[t % 2], VF[t % 2] + 4
            ex(X, 5, 7)
            if q == 0:
                e("s_waitcnt lgkmcnt(0)")
                rdV(t + 1)
            else:
                rdK(t + 2)
            ex(X, 7, 10)
            e(f"v_smfmac_f32_32x32x32_bf16 v[{O[q]}:{O[q]+15}], v[{V0}:{V0+3}], v[{X}:{X+7}], v3")
            ex(X, 10, 13)
            if t == 5 and q == 0:
                e("s_waitcnt vmcnt(4)")
                e("s_barrier")
                e("s_and_b32 s34, s30, 0xffff")
                dma("s30", "s34")
                e("s_add_u32 s30, s30, 16384")
                e("buffer_load_dword v109, v108, s[44:47], s42 offen ; touch")
                e("s_add_u32 s42, s42, 8192")
            ex(X, 13, 16)
            ex(Y, 0, 2)
            e(f"v_smfmac_f32_32x32x32_bf16 v[{O[q]}:{O[q]+15}], v[{V1}:{V1+3}], v[{X+8}:{X+15}], v3")
            ex(Y, 2, 5)
            qk(X, t + 1, q)
    e("s_add_u32 s31, s31, 16384")
    e("s_and_b32 s31, s31, 0xffff")
    e(f"v_mov_b32 v{vKc}, v{vKn}")
    e(f"v_mov_b32 v{vVc}, v{vVn}")
    e(f"v_add_u32 v{vKn}, s31, v12")
    e(f"v_mad_u32_u24 v{vVn}, v14, s31, v13")
    e("s_sub_u32 s33, s33, 1")
    e("s_cmp_lg_u32 s33, 0")
    e(f"s_cbranch_scc1 {L_loop}")
    stamp(k, 3)
    e("s_waitcnt lgkmcnt(0)")
    e("s_setprio 3")
    L_fin = k.newlabel("afin"); L_slow = k.newlabel("aslow")
    e(f"s_mov_b32 s36, {hx(f32bits(2.0**-60))}")
    e(f"s_mov_b32 s37, {hx(f32bits(2.0**60))}")
    e(f"s_mov_b32 s38, {hx(f32bits(2.0**120))}")
    for q in range(2):
        o = O[q]
        e(f"v_max3_f32 v{16+q}, abs(v{o}), abs(v{o+1}), abs(v{o+2})")
        e(f"v_max3_f32 v{16+q}, v{16+q}, abs(v{o+3}), abs(v{o+4})")
        e(f"v_max3_f32 v{16+q}, v{16+q}, abs(v{o+5}), abs(v{o+6})")
        e(f"v_max_f32_e64 v{16+q}, v{16+q}, abs(v{o+7})")
    for q in range(2):
        o = O[q]
        e(f"v_pk_add_f32 v[{20+4*q}:{21+4*q}], v[{o}:{o+1}], v[{o+2}:{o+3}]")
        e(f"v_pk_add_f32 v[{22+4*q}:{23+4*q}], v[{o+4}:{o+5}], v[{o+6}:{o+7}]")
    e("v_pk_add_f32 v[20:21], v[20:21], v[22:23]")
    e("v_pk_add_f32 v[24:25], v[24:25], v[26:27]")
    e("v_pk_add_f32 v[20:21], v[20:21], v[24:25]")
    e("v_max_f32 v16, v16, v17")
    e(f"v_min_f32 v18, v{O0+8}, v{O1+8}")
    e(f"v_max_f32 v19, v{O0+8}, v{O1+8}")
    e(f"v_cmp_o_f32 s[46:47], v{O0+8}, v{O1+8}")
    e("v_cmp_ge_f32 s[40:41], v18, s36")
    e("v_cmp_le_f32 s[42:43], v19, s37")
    e("v_cmp_le_f32 s[44:45], v16, s38")
    e("v_cmp_o_f32 vcc, v20, v21")
    e("s_and_b64 s[40:41], s[40:41], s[42:43]")
    e("s_and_b64 s[44:45], s[44:45], s[46:47]")
    e("s_and_b64 s[40:41], s[40:41], vcc")
    e("s_and_b64 s[40:41], s[40:41], s[44:45]")
    e("s_cmp_eq_u64 s[40:41], -1")
    e(f"s_cbranch_scc0 {L_slow}")
    k.label(L_fin)
    e(f"s_add_u32 s28, s17, {hx(WS_OF)}")
    e(f"s_add_u32 s29, s28, 32768")
    e(f"v_rcp_f32 v16, v{O0+8}")
    e(f"v_rcp_f32 v18, v{O1+8}")
    e("s_nop 0")
    e("v_mov_b32 v17, v16")
    e("v_mov_b32 v19, v18")
    for q in range(2):
        o = O[q]
        for r in range(0, 8, 2):
            e(f"v_pk_mul_f32 v[{o+r}:{o+r+1}], v[{o+r}:{o+r+1}], v[{16+2*q}:{17+2*q}]")
        for r in range(4):
            e(f"v_cvt_pk_bf16_f32 v{20+4*q+r}, v{o+2*r}, v{o+2*r+1}")
        e(f"buffer_store_dwordx4 v[{20+4*q}:{23+4*q}], v12, s[20:23], s{28+q} offen sc1")
    e("s_lshl_b32 s30, s14, 12")
    e("s_lshl_b32 s31, s15, 9")
    e("s_add_u32 s30, s30, s31")
    e("s_lshl_b32 s31, s16, 7")
    e("s_add_u32 s30, s30, s31")
    e(f"s_add_u32 s30, s30, {hx(FO)}")
    set_flag(k, 20, "s30", 30)
    stamp(k, 10)
    arrive(k, 20, 34)
    e("s_endpgm")
    k.label(L_slow)
    e("s_waitcnt vmcnt(0)")
    e("v_and_b32 v13, 15, v2")
    e("v_lshlrev_b32 v13, 4, v13")
    e("v_lshrrev_b32 v15, 5, v2")
    e("v_lshl_add_u32 v13, v15, 8, v13")
    e("v_add_u32 v13, 8192, v13")
    e("v_cmp_eq_u32 s[54:55], 0, v14")
    e("v_mov_b32 v108, 0x3f803f80")
    e("v_mov_b32 v110, 0xff800000")
    e("v_mov_b32 v111, 0xff800000")
    for r in range(16):
        e(f"v_mov_b32 v{O0+r}, 0")
        e(f"v_mov_b32 v{O1+r}, 0")
    e("s_mov_b32 s33, 0")
    L_sl = k.newlabel("asl")
    k.label(L_sl)
    e("s_lshr_b32 s34, s33, 3")
    e("s_lshl_b32 s34, s34, 14")
    e("s_and_b32 s35, s33, 7")
    e("s_lshl_b32 s35, s35, 10")
    e("s_add_u32 s34, s34, s35")
    e("buffer_load_dwordx4 v[80:83], v12, s[24:27], s34 offen sc1")
    e("buffer_load_dwordx4 v[88:91], v13, s[24:27], s34 offen sc1")
    e("buffer_load_dwordx4 v[92:95], v13, s[24:27], s34 offen offset:512 sc1")
    e("s_waitcnt vmcnt(0)")
    for r in range(8): e(f"v_cndmask_b32 v{88+r}, v{88+r}, v108, s[54:55]")
    for q in range(2):
        X = S[q]; m = 110 + q; o = O[q]
        e(f"v_mfma_f32_32x32x16_bf16 v[{X}:{X+15}], v[80:83], v[{Qr[q]}:{Qr[q]+3}], 0")
        e("s_nop 11")
        e(f"v_max3_f32 v112, v{X}, v{X+1}, v{X+2}")
        for r in range(3, 15, 2): e(f"v_max3_f32 v112, v112, v{X+r}, v{X+r+1}")
        e(f"v_max_f32 v112, v112, v{X+15}")
        e("v_mov_b32 v113, v112")
        e("s_nop 1")
        e("v_permlane32_swap_b32 v112, v113")
        e("s_nop 1")
        e(f"v_max3_f32 v112, v112, v113, v{m}")
        e(f"v_cmp_eq_f32 vcc, v{m}, v112")
        e(f"v_sub_f32 v113, v{m}, v112")
        e("v_exp_f32 v113, v113")
        e("s_nop 0")
        e("v_cndmask_b32 v113, v113, 1.0, vcc")
        e(f"v_mov_b32 v{m}, v112")
        e("v_cmp_eq_f32 vcc, 0xff800000, v112")
        e("s_nop 1")
        e("v_cndmask_b32 v112, v112, 0, vcc")
        for r in range(16): e(f"v_mul_f32 v{o+r}, v113, v{o+r}")
        for r in range(16): e(f"v_sub_f32 v{X+r}, v{X+r}, v112")
        for r in range(16): e(f"v_exp_f32 v{X+r}, v{X+r}")
        e("s_nop 1")
        e(f"v_smfmac_f32_32x32x32_bf16 v[{o}:{o+15}], v[88:91], v[{X}:{X+7}], v3")
        e(f"v_smfmac_f32_32x32x32_bf16 v[{o}:{o+15}], v[92:95], v[{X+8}:{X+15}], v3")
    e("s_nop 11")
    e("s_add_u32 s33, s33, 1")
    e("s_cmp_lt_u32 s33, 64")
    e(f"s_cbranch_scc1 {L_sl}")
    e(f"s_branch {L_fin}")

U_BUF = 28928
U_UP = 14464
D_W = 17408
D_QS = 1088

US = 24576
CSBUF = 3 * US

def emit_G(k):
    e = k.e
    prof_begin(k)
    EXP = ENV("EXP", "")
    e("s_load_dwordx4 s[4:7], s[0:1], 48")
    e("s_load_dwordx2 s[12:13], s[0:1], 88")
    e("s_load_dwordx2 s[8:9], s[0:1], 0")
    e("v_lshrrev_b32 v1, 6, v0")
    e("v_and_b32 v2, 63, v0")
    e("v_readfirstlane_b32 s16, v1")
    e("v_lshlrev_b32 v3, 4, v2")
    e("s_and_b32 s14, s3, 3")
    e("s_lshl_b32 s14, s14, 2")
    e("s_bfe_u32 s15, s3, 0x20003")
    e("s_add_u32 s14, s14, s15")
    e("s_bfe_u32 s15, s3, 0x10002")
    e("s_mul_i32 s15, s15, 7")
    e("s_lshr_b32 s17, s3, 5")
    e("s_add_u32 s15, s15, s17")
    e("s_and_b32 s18, s16, 1")
    e("s_lshr_b32 s19, s16, 1")
    L_noup = k.newlabel("noup")
    e("v_lshrrev_b32 v16, 4, v2")
    e("v_lshl_add_u32 v17, v16, 1, s18")
    e("v_bfe_u32 v18, v2, 1, 3")
    e("v_xor_b32 v17, v17, v18")
    e("v_lshlrev_b32 v17, 5, v17")
    e("v_and_b32 v18, 1, v2")
    e("v_lshl_add_u32 v17, v18, 4, v17")
    e("v_mul_u32_u24 v16, 3584, v16")
    e("v_add_u32 v4, v16, v17")
    for n in range(1, 4): e(f"v_add_u32 v{4+n}, {n*(4*3584-1024)}, v4")
    e("v_lshrrev_b32 v16, 2, v2")
    e("v_lshrrev_b32 v17, 4, v2")
    e("v_and_b32 v18, 3, v2")
    e("v_xor_b32 v17, v17, v18")
    e("v_lshlrev_b32 v17, 4, v17")
    e("v_lshl_add_u32 v8, v16, 10, v17")
    e(f"v_add_u32 v9, {16384-1024}, v8")
    e(f"s_mul_i32 s20, s19, {16*3584}")
    e("s_lshl_b32 s21, s15, 8")
    e("s_add_u32 s20, s20, s21")
    e("s_lshl_b32 s21, s18, 13")
    e("s_lshl_b32 s22, s19, 12")
    e("s_add_u32 s21, s21, s22")
    e("s_lshl_b32 s22, s16, 11")
    e("s_add_u32 s22, s22, 16384")
    e("s_lshl_b32 s34, s14, 17")
    e("s_lshl_b32 s23, s16, 15")
    e("s_add_u32 s34, s34, s23")
    e("s_cmp_eq_u32 s18, 1")
    e("s_waitcnt lgkmcnt(0)")
    e("s_cselect_b32 s24, s6, s4")
    e("s_cselect_b32 s25, s7, s5")
    e(f"s_mov_b32 s26, {512*3584}")
    e("s_mov_b32 s27, 0x20000")
    srd(k, 36, 8, 2048 * 1024)
    load_epoch(k)
    srd(k, 28, 12, WS_SIZE)
    e("s_cmp_ge_u32 s3, 224")
    e(f"s_cbranch_scc1 {L_noup}")
    ACC = 128; AF = 16; BF = 48; AR = 64; BR = 68; SEL = 72; vST = 77; ST = 80; CT = 96; CS = 112
    vm = Q(); lg = Q()
    def dma_ops(slot, tag):
        def mk(n):
            def f():
                if n == 0: e(f"s_add_u32 m0, s22, {slot*US}"); e("s_nop 0")
                if n == 2: e(f"s_add_u32 m0, s21, {slot*US}"); e("s_add_u32 s34, s34, 64")
                if n < 2: e(f"buffer_load_dwordx4 v{8+n}, s[36:39], s34 offen offset:{n*1024} lds")
                else: e(f"buffer_load_dwordx4 v{4+n-2}, s[24:27], s20 offen offset:{(n-2)*1024} lds")
                vm.push(tag)
                if n == 5: e(f"s_add_u32 s20, s20, {32*3584}")
            return f
        return [mk(n) for n in range(6)]
    def rdA(slot, ks, t):
        a = AF + 16 * ks + 4 * t
        for q in range(2):
            e(f"ds_read_b64_tr_b16 v[{a+2*q}:{a+2*q+1}], v{AR+t} offset:{slot*US + (16*ks+4*q)*256}")
            lg.push(("A", ks, t))
    def rdB(slot, ks, tb):
        b = BF + 8 * ks + 4 * tb
        e(f"ds_read_b128 v[{b}:{b+3}], v{BR+ks} offset:{slot*US + tb*2048}"); lg.push(("B", ks, tb))
    def lgwait(tags):
        n = lg.need(tags)
        if n is not None: e(f"s_waitcnt lgkmcnt({min(n, 14)})")
    for st in range(3):
        for f in dma_ops(st, ("D", st)): f()
    if ENV("GT", "1") == "1":
        e("v_lshlrev_b32 v16, 7, v2")
        e("s_lshl_b32 s47, s3, 13")
        L_t2 = k.newlabel("t2")
        e("s_cmp_ge_u32 s16, 2")
        e(f"s_cbranch_scc1 {L_t2}")
        e("buffer_load_dword v78, v16, s[24:27], s47 offen ; touch")
        k.label(L_t2)
    e("v_lshrrev_b32 v16, 5, v2")
    e("v_bfe_u32 v17, v2, 2, 2")
    e("v_bfe_u32 v18, v2, 4, 1")
    e("v_lshl_add_u32 v19, v16, 3, v17")
    e("v_lshlrev_b32 v19, 8, v19")
    e("v_lshl_add_u32 v19, v18, 13, v19")
    e("v_and_b32 v20, 3, v2")
    e("v_lshl_add_u32 v19, v20, 3, v19")
    e("v_lshl_add_u32 v17, v17, 1, v18")
    e("s_lshl_b32 s47, s19, 2")
    e("v_xor_b32 v17, s47, v17")
    for t in range(4):
        e(f"v_xor_b32 v20, {t}, v17")
        e(f"v_lshl_add_u32 v{AR+t}, v20, 5, v19")
    e("v_and_b32 v17, 31, v2")
    e(f"v_lshlrev_b32 v{vST}, 4, v17")
    e("v_bfe_u32 v18, v2, 2, 2")
    e("v_xor_b32 v18, v18, v16")
    e("v_lshlrev_b32 v18, 4, v18")
    e("v_lshl_add_u32 v18, v17, 6, v18")
    e("s_lshl_b32 s47, s18, 12")
    e("s_add_u32 s47, s47, 16384")
    e(f"v_add_u32 v{BR}, s47, v18")
    e(f"v_xor_b32 v{BR+1}, 32, v{BR}")
    e("v_lshrrev_b32 v18, 4, v2")
    e("v_xor_b32 v18, v18, v2")
    e("v_and_b32 v18, 1, v18")
    e("v_cmp_eq_u32 vcc, 0, v18")
    e("v_mov_b32 v18, 0x3f803f80")
    e("s_nop 0")
    for r in range(4): e(f"v_cndmask_b32 v{SEL+r}, 0, v18, vcc")
    for r in range(16): e(f"v_mov_b32 v{CS+r}, 0")
    e("s_lshl_b32 s44, s14, 1")
    e("s_add_u32 s44, s44, s18")
    e("s_lshl_b32 s45, s44, 10")
    e(f"s_add_u32 s45, s45, {hx(WS_ST)}")
    for r in range(128): e(f"v_mov_b32 v{ACC+r}, 0")
    e("s_waitcnt lgkmcnt(0)")
    make_tag(k)
    stamp(k, 1)
    e(f"s_waitcnt vmcnt({vm.need([('D', 0)])})")
    e("s_barrier")
    for tb in range(2): rdB(0, 0, tb)
    for t in range(4): rdA(0, 0, t)
    stamp(k, 2)
    e(f"s_setprio {ENV('GP1', '3')}")
    e("s_mov_b32 s48, 5")
    L_th1 = k.newlabel("th1"); L_upd = k.newlabel("upd")
    e("s_cmp_eq_u32 s18, 1")
    e(f"s_cbranch_scc1 {L_th1}")
    vm0, lg0 = list(vm.q), list(lg.q)
    def stage(th, slot, st, last=False, stats=False):
        nxt = (slot + 1) % 3
        pend = []
        for ks in range(2):
            for t in range(4):
                for tb in range(2):
                    lgwait([("A", ks, t), ("B", ks, tb)])
                    a = AF + 16 * ks + 4 * t; b = BF + 8 * ks + 4 * tb; c = ACC + 32 * t + 16 * tb
                    e(f"v_mfma_f32_32x32x16_bf16 v[{c}:{c+15}], v[{a}:{a+3}], v[{b}:{b+3}], v[{c}:{c+15}]")
                    if "nodot" not in EXP and ks == th and tb == 1:
                        e(f"v_mfma_f32_16x16x32_bf16 v[{CS+4*t}:{CS+4*t+3}], v[{a}:{a+3}], v[{SEL}:{SEL+3}], v[{CS+4*t}:{CS+4*t+3}]")
                    i = 2 * t + tb
                    if ks == 0:
                        if i == 0: rdB(slot, 1, 0); rdB(slot, 1, 1)
                        elif i <= 4: rdA(slot, 1, i - 1)
                        if stats and i == 6:
                            e(f"buffer_load_dwordx4 v[{ST}:{ST+3}], v{vST}, s[28:31], s45 offen sc1"); vm.push(("S",))
                            e(f"buffer_load_dwordx4 v[{ST+4}:{ST+7}], v{vST}, s[28:31], s45 offen offset:512 sc1"); vm.push(("S",))
                    elif not last:
                        if i == 0:
                            n = vm.need([("D", st + 1)])
                            lg.q = []
                            e(f"s_waitcnt vmcnt({n}) lgkmcnt(0)")
                            e("s_barrier")
                            rdB(nxt, 0, 0); rdB(nxt, 0, 1)
                            pend = dma_ops(slot, ("D", st + 3))
                        elif i <= 4: rdA(nxt, 0, i - 1)
                        if i >= 2 and pend: pend.pop(0)()
        assert not pend
    for th in range(2):
        if th == 1: k.label(L_th1)
        vm.q, lg.q = list(vm0), list(lg0)
        L = k.newlabel("uloop")
        k.label(L)
        first = None
        for rep in range(3):
            saved = k.lines; k.lines = []
            for slot in range(3): stage(th, slot, 3 * rep + slot, stats=(slot == 1))
            body = k.lines; k.lines = saved
            if rep == 0: first = body; k.lines += body
            else: assert body == first, "loop not in steady state"
        e("s_sub_u32 s48, s48, 1")
        e("s_cmp_lg_u32 s48, 0")
        e(f"s_cbranch_scc1 {L}")
        stage(th, 0, 15, last=True)
        if th == 0: e(f"s_branch {L_upd}")
    k.label(L_upd)
    e(f"s_setprio {ENV('GP2', '3')}")
    stamp(k, 3)
    if "gonly" in EXP:
        e("s_endpgm"); k.label(L_noup); e("s_endpgm"); return
    c1 = -2.0 * math.sqrt(2.0 / math.pi) * math.log2(math.e)
    c2 = c1 * 0.044715
    e("s_mov_b32 s49, 0xffff0000")
    e("s_lshl_b32 s47, s19, 10")
    e(f"s_add_u32 s47, s47, {CSBUF}")
    e("v_lshlrev_b32 v14, 2, v2")
    e("v_add_u32 v14, s47, v14")
    e("v_and_b32 v12, 1, v2")
    e("v_lshlrev_b32 v12, 6, v12")
    e("v_and_b32 v13, 48, v2")
    e("v_add_u32 v12, v12, v13")
    e("s_lshl_b32 s50, s18, 7")
    e("s_add_u32 s50, s50, s47")
    e("v_add_u32 v12, s50, v12")
    for r in range(16): e(f"v_cvt_pk_bf16_f32 v{CT+r}, v{CS+r}, v{CS+r}")
    for r in range(16): e(f"v_and_b32 v{CT+r}, s49, v{CT+r}")
    for r in range(0, 16, 2): e(f"v_pk_add_f32 v[{CS+r}:{CS+r+1}], v[{CS+r}:{CS+r+1}], v[{CT+r}:{CT+r+1}] neg_lo:[0,1] neg_hi:[0,1]")
    for r in range(16): e(f"v_cvt_pk_bf16_f32 v{CT+r}, v{CS+r}, v{CT+r}")
    e("s_mov_b32 exec_lo, 0x00030003")
    e("s_mov_b32 exec_hi, 0x00030003")
    for t in range(4): e(f"ds_write_b128 v12, v[{CT+4*t}:{CT+4*t+3}] offset:{t*256}")
    e("s_mov_b64 exec, -1")
    e(f"s_mov_b32 s40, {hx(f32bits(c2))}")
    e("s_mov_b32 s41, s40")
    e(f"v_mov_b32 v12, {hx(f32bits(c1))}")
    e(f"v_mov_b32 v13, {hx(f32bits(c1))}")
    e(f"s_mul_i32 s35, s44, {2*114688}")
    e("s_lshl_b32 s47, s15, 13")
    e("s_add_u32 s35, s35, s47")
    e("s_lshl_b32 s47, s19, 12")
    e("s_add_u32 s35, s35, s47")
    e(f"s_add_u32 s35, s35, {hx(WS_HF)}")
    e("s_add_u32 s34, s35, 114688")
    e("s_lshl_b32 s44, s44, 12")
    e("s_lshl_b32 s47, s15, 8")
    e("s_add_u32 s44, s44, s47")
    e("s_lshl_b32 s47, s19, 7")
    e("s_add_u32 s44, s44, s47")
    e(f"s_add_u32 s44, s44, {hx(FH)}")
    e("s_waitcnt vmcnt(0) lgkmcnt(0)")
    e("s_barrier")
    for t in range(4):
        e(f"ds_read_b32 v{CT+4*t}, v14 offset:{t*256}")
        e(f"v_mov_b32 v{CT+4*t+1}, 0")
        e(f"v_mov_b32 v{CT+4*t+2}, 0")
        e(f"v_mov_b32 v{CT+4*t+3}, 0")
    Ls = k.newlabel("stp"); Lsd = k.newlabel("stpd")
    e("s_mov_b32 s60, 0x40000")
    k.label(Ls)
    e(f"v_cmp_eq_u64 vcc, s[{TAG}:{TAG+1}], v[{ST+2}:{ST+3}]")
    e(f"v_cmp_eq_u64 s[62:63], s[{TAG}:{TAG+1}], v[{ST+6}:{ST+7}]")
    e("s_and_b64 vcc, vcc, s[62:63]")
    e("s_cmp_eq_u64 vcc, -1")
    e(f"s_cbranch_scc1 {Lsd}")
    e("s_sleep 4")
    e(f"buffer_load_dwordx4 v[{ST}:{ST+3}], v{vST}, s[28:31], s45 offen sc1")
    e(f"buffer_load_dwordx4 v[{ST+4}:{ST+7}], v{vST}, s[28:31], s45 offen offset:512 sc1")
    e("s_waitcnt vmcnt(0)")
    e("s_sub_u32 s60, s60, 1")
    e("s_cmp_lg_u32 s60, 0")
    e(f"s_cbranch_scc1 {Ls}")
    k.label(Lsd)
    NM = 48
    for tb in range(2):
        S_ = ST + 4 * tb
        e(f"v_lshrrev_b32 v{NM+4*tb}, 16, v{S_}")
        e(f"v_or_b32 v{NM+4*tb}, v{NM+4*tb}, v{S_}")
        for r in range(1, 4): e(f"v_mov_b32 v{NM+4*tb+r}, v{NM+4*tb}")
        e(f"v_rcp_f32 v{S_+2}, v{S_+1}")
        e(f"v_mov_b32 v{S_}, v{S_+1}")
        e(f"v_mov_b32 v{S_+3}, v{S_+2}")
    e("s_waitcnt lgkmcnt(0)")
    for t in range(4):
        for tb in range(2):
            c = ACC + 32 * t + 16 * tb
            e(f"v_mfma_f32_32x32x16_bf16 v[{c}:{c+15}], v[{CT+4*t}:{CT+4*t+3}], v[{NM+4*tb}:{NM+4*tb+3}], v[{c}:{c+15}]")
    def down_setup1():
        e("s_load_dwordx2 s[4:5], s[0:1], 64")
        e("s_load_dwordx2 s[6:7], s[0:1], 32")
        e("s_load_dwordx2 s[10:11], s[0:1], 72")
        e("s_and_b32 s14, s3, 7")
        e("s_lshl_b32 s14, s14, 2")
        e("s_lshr_b32 s15, s3, 6")
        e("s_add_u32 s14, s14, s15")
        e("s_bfe_u32 s15, s3, 0x30003")
        e("v_lshrrev_b32 v8, 3, v2")
        e("v_and_b32 v9, 7, v2")
        e("v_lshlrev_b32 v10, 1, v8")
        e("v_and_b32 v10, 4, v10")
        e("v_xor_b32 v10, v10, v9")
        e("v_lshlrev_b32 v10, 4, v10")
        e("v_lshl_add_u32 v6, v8, 10, v10")
        e("v_add_u32 v7, 7168, v6")
        e(f"s_mul_i32 s17, s16, {D_W}")
        e(f"s_mul_i32 s18, s16, {28*16*1024}")
        e("s_lshl_b32 s20, s15, 7")
        e("s_add_u32 s18, s18, s20")
        e("s_waitcnt lgkmcnt(0)")
        srd(k, 24, 4, 1792 * 1024)
    R = 7
    def dma(slot, srdw, soff, tag):
        e(f"s_add_u32 m0, s17, {slot*2048}")
        e("s_nop 0")
        e(f"buffer_load_dwordx4 v6, s[{srdw}:{srdw+3}], {soff} offen lds"); vm.push(tag)
        e(f"buffer_load_dwordx4 v7, s[{srdw}:{srdw+3}], {soff} offen offset:1024 lds"); vm.push(tag)
        e(f"s_add_u32 {soff}, {soff}, 16384")
    down_setup1()
    vm.q = []
    T = 16
    for u in range(8):
        t, tb = u // 2, u % 2
        A = ACC + 32 * t + 16 * tb
        S_ = ST + 4 * tb
        tt = T + 16 * (u % 2)
        if u < R: dma(u, 24, "s18", ("D", u))
        for p in range(4):
            a = A + 2 * p
            e(f"v_pk_mul_f32 v[{a}:{a+1}], v[{a}:{a+1}], v[{S_+2}:{S_+3}]")
        for p in range(4):
            a = A + 2 * p
            e(f"v_pk_mul_f32 v[{tt+2*p}:{tt+2*p+1}], v[{a}:{a+1}], v[{a}:{a+1}]")
        for p in range(4):
            e(f"v_pk_fma_f32 v[{tt+2*p}:{tt+2*p+1}], v[{tt+2*p}:{tt+2*p+1}], s[40:41], v[12:13]")
        for p in range(4):
            a = A + 2 * p
            e(f"v_pk_mul_f32 v[{tt+2*p}:{tt+2*p+1}], v[{tt+2*p}:{tt+2*p+1}], v[{a}:{a+1}]")
        for r in range(8): e(f"v_exp_f32 v{tt+r}, v{tt+r}")
        for p in range(4):
            a = A + 2 * p
            e(f"v_pk_mul_f32 v[{a}:{a+1}], v[{a}:{a+1}], v[{a+8}:{a+9}]")
        for p in range(4):
            e(f"v_pk_fma_f32 v[{tt+2*p}:{tt+2*p+1}], v[{tt+2*p}:{tt+2*p+1}], v[{S_}:{S_+1}], v[{S_}:{S_+1}]")
        for r in range(8): e(f"v_rcp_f32 v{tt+r}, v{tt+r}")
        e("s_nop 0")
        for p in range(4):
            a = A + 2 * p
            e(f"v_pk_mul_f32 v[{a}:{a+1}], v[{a}:{a+1}], v[{tt+2*p}:{tt+2*p+1}]")
        for p in range(4):
            a = A + 2 * p
            e(f"v_cvt_pk_bf16_f32 v{tt+8+p}, v{a}, v{a+1}")
        e(f"buffer_store_dwordx4 v[{tt+8}:{tt+11}], v3, s[28:31], s{35 if tb == 0 else 34} offen offset:{t*1024} sc1")
    stamp(k, 8)
    set_flag(k, 28, "s44", 60)
    stamp(k, 9)
    L_dn = k.newlabel("dn")
    e(f"s_branch {L_dn}")
    k.label(L_noup)
    e("s_waitcnt lgkmcnt(0)")
    make_tag(k)
    down_setup1()
    for u in range(R): dma(u, 24, "s18", None)
    k.label(L_dn)
    e("v_add_u32 v4, 114688, v3")
    e("v_add_u32 v5, 32768, v3")
    e("v_lshlrev_b32 v14, 4, v9")
    e("v_lshl_add_u32 v14, v8, 10, v14")
    e(f"v_mul_u32_u24 v15, {D_QS}, v9")
    e("v_lshl_add_u32 v15, v8, 4, v15")
    e("v_lshrrev_b32 v10, 5, v2")
    e("v_bfe_u32 v11, v2, 2, 2")
    e("v_lshl_add_u32 v10, v10, 2, v11")
    e("v_lshlrev_b32 v10, 7, v10")
    e("v_and_b32 v12, 1, v2")
    e("v_lshl_add_u32 v10, v12, 3, v10")
    e("v_add_u32 v10, s17, v10")
    e("v_bfe_u32 v12, v2, 4, 1")
    e("v_bfe_u32 v13, v2, 1, 1")
    e("v_lshl_add_u32 v12, v12, 1, v13")
    e("v_lshlrev_b32 v11, 1, v11")
    e("v_and_b32 v11, 4, v11")
    e("v_xor_b32 v12, v12, v11")
    e("v_lshl_add_u32 v8, v12, 4, v10")
    e("v_xor_b32 v12, 4, v12")
    e("v_lshl_add_u32 v9, v12, 4, v10")
    e("v_add_u32 v10, s17, v3")
    e(f"s_mul_i32 s19, s14, {2*114688}")
    e(f"s_mul_i32 s21, s16, {28*1024}")
    e("s_add_u32 s19, s19, s21")
    e(f"s_add_u32 s19, s19, {hx(WS_HF)}")
    e("s_lshl_b32 s22, s16, 17")
    e("s_add_u32 s22, s22, s20")
    e("s_lshl_b32 s23, s14, 16")
    e("s_lshl_b32 s21, s16, 13")
    e("s_add_u32 s23, s23, s21")
    e(f"s_add_u32 s23, s23, {hx(WS_OF)}")
    e("s_lshl_b32 s46, s14, 16")
    e("s_lshl_b32 s21, s16, 14")
    e("s_add_u32 s46, s46, s21")
    e("s_add_u32 s46, s46, s20")
    e("s_add_u32 s47, s46, 8192")
    srd(k, 32, 6, 512 * 1024)
    srd(k, 40, 10, 2048 * 1024)
    e("s_lshr_b32 s48, s16, 1")
    e(f"s_mul_i32 s48, s48, {8*D_QS}")
    e("s_and_b32 s49, s16, 1")
    e("s_lshl_b32 s49, s49, 8")
    e("s_add_u32 s48, s48, s49")
    e("v_add_u32 v11, s48, v15")
    e("v_and_b32 v12, 31, v2")
    e("v_min_u32 v13, 27, v12")
    e("v_lshlrev_b32 v12, 7, v12")
    e("v_lshlrev_b32 v13, 7, v13")
    e("s_lshl_b32 s53, s14, 12")
    e(f"s_add_u32 s52, s53, {hx(FH)}")
    e(f"s_add_u32 s53, s53, {hx(FO)}")
    arrive(k, 28, 64)
    FA = 128; SAc = 192; AF = 16; BF = 32
    e(f"s_setprio {ENV('GP3', '0')}")
    wg_poll(k, 1, 13, 28, "s52", 60, sleep=int(ENV("SL1", "2")))
    vm.q = []
    def ldB(slot, v1, soff, tag):
        b = BF + 8 * slot
        e(f"buffer_load_dwordx4 v[{b}:{b+3}], v3, s[28:31], {soff} offen sc1"); vm.push(tag)
        e(f"buffer_load_dwordx4 v[{b+4}:{b+7}], v{v1}, s[28:31], {soff} offen sc1"); vm.push(tag)
        e(f"s_add_u32 {soff}, {soff}, 1024")
    def rdA(slot, ab, base=None):
        for nt in range(2):
            a = (AF + 8 * ab if base is None else base) + 4 * nt
            for q in range(2):
                e(f"ds_read_b64_tr_b16 v[{a+2*q}:{a+2*q+1}], v{8+nt} offset:{slot*2048 + q*1024}")
    def mfmas(acc, abase, slot, first=False):
        for tbh in range(2):
            for nt in range(2):
                c = acc + 16 * (nt + 2 * tbh); a = abase + 4 * nt; b = BF + 8 * slot + 4 * tbh
                cs = "0" if first else f"v[{c}:{c+15}]"
                e(f"v_mfma_f32_32x32x16_bf16 v[{c}:{c+15}], v[{a}:{a+3}], v[{b}:{b+3}], {cs}")
    for s in range(R): ldB(s, 4, "s19", ("B", s))
    stamp(k, 4)
    rdA(0, 0)
    def body(kind):
        for s in range(R):
            ab = s % 2
            if kind == "first": n = min(2 * (R - 1 - s) + 4 * s, 2 + 4 * (R - 2))
            elif kind == "mid": n = 2 + 4 * (R - 2)
            else: n = 2 + 4 * (R - 2 - s) if s < R - 1 else 0
            e(f"s_waitcnt vmcnt({n}) lgkmcnt(0)")
            nxt = (s + 1) % R
            fst = kind == "first" and s == 0
            if s < R - 1:
                rdA(nxt, nxt % 2)
                mfmas(FA, AF + 8 * ab, s, fst)
            else:
                mfmas(FA, AF + 8 * ab, s, fst)
                if kind != "last": rdA(0, 0)
            if kind != "last":
                dma(s, 24, "s18", None)
                ldB(s, 4, "s19", None)
    body("first")
    e("s_mov_b32 s50, 2")
    L = k.newlabel("dloop")
    k.label(L)
    body("mid")
    e("s_sub_u32 s50, s50, 1")
    e("s_cmp_lg_u32 s50, 0")
    e(f"s_cbranch_scc1 {L}")
    body("last")
    e(f"s_setprio {ENV('GP4', '3')}")
    stamp(k, 5)
    e("buffer_load_dwordx4 v[96:99], v14, s[36:39], s46 offen")
    e("buffer_load_dwordx4 v[100:103], v14, s[36:39], s47 offen")
    def red_write(acc):
        for t in range(4):
            for qd in range(4):
                r = acc + 16 * t + 4 * qd
                e(f"ds_write_b128 v10, v[{r}:{r+3}] offset:{(4*t+qd)*D_QS}")
    def red_read(dst):
        for p in range(2):
            for src in range(4):
                for h in range(2):
                    r = BF + 32 * p + 8 * src + 4 * h
                    e(f"ds_read_b128 v[{r}:{r+3}], v11 offset:{src*D_W + h*512 + p*128}")
        for p in range(2):
            e(f"s_waitcnt lgkmcnt({8*(1-p)})")
            b = BF + 32 * p
            for j in range(0, 8, 2):
                e(f"v_pk_add_f32 v[{b+j}:{b+j+1}], v[{b+j}:{b+j+1}], v[{b+8+j}:{b+9+j}]")
                e(f"v_pk_add_f32 v[{b+16+j}:{b+17+j}], v[{b+16+j}:{b+17+j}], v[{b+24+j}:{b+25+j}]")
            for j in range(0, 8, 2):
                e(f"v_pk_add_f32 v[{dst+8*p+j}:{dst+8*p+j+1}], v[{b+j}:{b+j+1}], v[{b+16+j}:{b+17+j}]")
    e("s_nop 6")
    red_write(FA)
    e("s_waitcnt lgkmcnt(0)")
    e("s_barrier")
    G = 104
    red_read(G)
    e("s_barrier")
    for s in range(8): dma(s, 32, "s22", None)
    e(f"s_mov_b32 s48, {hx(f32bits(-math.log2(math.e)))}")
    e("s_mov_b32 s49, s48")
    e("s_mov_b32 s50, 1.0")
    e("s_mov_b32 s51, 1.0")
    for j in range(0, 16, 2): e(f"v_pk_mul_f32 v[{FA+j}:{FA+j+1}], v[{G+j}:{G+j+1}], s[48:49]")
    for j in range(16): e(f"v_exp_f32 v{FA+j}, v{FA+j}")
    e("s_nop 0")
    for j in range(0, 16, 2): e(f"v_pk_add_f32 v[{FA+j}:{FA+j+1}], v[{FA+j}:{FA+j+1}], s[50:51]")
    for j in range(16): e(f"v_rcp_f32 v{FA+j}, v{FA+j}")
    e("s_nop 0")
    for j in range(0, 16, 2): e(f"v_pk_mul_f32 v[{G+j}:{G+j+1}], v[{G+j}:{G+j+1}], v[{FA+j}:{FA+j+1}]")
    e("s_mov_b32 s48, 0xffff0000")
    e("s_waitcnt vmcnt(0)")
    XF = 16
    for p in range(2):
        for r in range(4):
            x = 96 + 4 * p + r
            e(f"v_lshlrev_b32 v{XF+8*p+2*r}, 16, v{x}")
            e(f"v_and_b32 v{XF+8*p+2*r+1}, s48, v{x}")
    WF = 128
    for s in range(8): rdA(s, 0, base=WF + 8 * s)
    e("s_waitcnt lgkmcnt(0)")
    stamp(k, 6)
    e("s_setprio 0")
    wg_poll(k, 0, 12, 28, "s53", 120, sleep=int(ENV("SL2", "2")))
    e("s_setprio 3")
    stamp(k, 10)
    vm.q = []
    for s in range(8): ldB(s, 5, "s23", ("B", s))
    for s in range(8):
        e(f"s_waitcnt vmcnt({vm.need([('B', s)])})")
        mfmas(SAc, WF + 8 * s, s, first=(s == 0))
    e("s_nop 8")
    red_write(SAc)
    e("s_waitcnt lgkmcnt(0)")
    e("s_barrier")
    red_read(FA)
    for p in range(2):
        for r in range(4):
            j = 8 * p + 2 * r
            e(f"v_pk_fma_f32 v[{XF+j}:{XF+j+1}], v[{FA+j}:{FA+j+1}], v[{G+j}:{G+j+1}], v[{XF+j}:{XF+j+1}]")
        for r in range(4):
            j = 8 * p + 2 * r
            e(f"v_cvt_pk_bf16_f32 v{96+4*p+r}, v{XF+j}, v{XF+j+1}")
        e(f"buffer_store_dwordx4 v[{96+4*p}:{99+4*p}], v14, s[40:43], s{46+p} offen")
    e("s_endpgm")

def gen_mega(name):
    k = Kernel(name)
    L_end = k.newlabel("end"); L_g = k.newlabel("roleg")
    k.e("s_cmp_ge_u32 s2, 512")
    k.e(f"s_cbranch_scc1 {L_end}")
    k.e("s_and_b32 s3, s2, 255")
    k.e("s_cmp_ge_u32 s2, 256")
    k.e(f"s_cbranch_scc1 {L_g}")
    k.e(f"s_setprio {ENV('AP0', '3')}")
    if "gonly" in ENV("EXP", ""): k.e(f"s_branch {L_end}")
    else: emit_A(k)
    k.label(L_g)
    k.e(f"s_setprio {ENV('GP0', '2')}")
    emit_G(k)
    k.label(L_end)
    k.e("s_endpgm")
    prof_finish(k, 1)
    k.min_vgpr = 256
    return k
```
